```python
import torch

def _softmax(x, axis=-1):
    return torch.softmax(x, dim=axis)
def _gelu(x):
    return torch.nn.functional.gelu(x, approximate="tanh")
def _silu(x):
    return torch.nn.functional.silu(x)
def _sigmoid(x):
    return torch.sigmoid(x)
def _layernorm(x, axis=-1, eps=1e-5):
    m = x.mean(dim=axis, keepdim=True)
    v = x.var(dim=axis, keepdim=True, unbiased=False)
    return (x - m) / torch.sqrt(v + eps)
def _scatter_add(tgt, idx, src, axis=0):
    return tgt.clone().index_add_(axis, idx, src)
def _segment_sum(src, seg, n):
    out = torch.zeros((n,) + src.shape[1:], dtype=src.dtype)
    return out.index_add_(0, seg, src)
def _pad(x, pw):
    flat = tuple(v for pair in reversed(pw) for v in pair)
    return torch.nn.functional.pad(x, flat)

kernel_name = 'sequential_preLN__sliding_local_dilated__dense_activation_gelu__prompt'

def setup_inputs():

    _w = (lambda a: (lambda t: t.to(torch.bfloat16) if t.is_floating_point() else t)(torch.as_tensor(a)))
    def _A_setup():
        B, S, D = 1, 2048, 576
        return {
            "x": _w((lambda *s: torch.randn(*s, dtype=torch.bfloat16) * 0.05)(B, S, D)),
            "wqkv": _w((lambda *s: torch.randn(*s, dtype=torch.bfloat16) * 0.05)(D, 3 * D)),
            "wo": _w((lambda *s: torch.randn(*s, dtype=torch.bfloat16) * 0.05)(D, D)),
        }
    _A_in = _A_setup()

    def _B_setup():
        B, S, D, F = 1, 2048, 576, 4608
        return {
            "x": _w((lambda *s: torch.randn(*s, dtype=torch.bfloat16) * 0.05)(B, S, D)),
            "w1": _w((lambda *s: torch.randn(*s, dtype=torch.bfloat16) * 0.8)(D, F) * (D ** -0.5)),
            "b1": _w((lambda *s: torch.randn(*s, dtype=torch.bfloat16) * 0.8)(F) * 0.01),
            "w2": _w((lambda *s: torch.randn(*s, dtype=torch.bfloat16) * 0.8)(F, D) * (F ** -0.5)),
            "b2": _w((lambda *s: torch.randn(*s, dtype=torch.bfloat16) * 0.8)(D) * 0.01),
        }
    _B_in = _B_setup()

    return {
        "A_x": _A_in["x"],
        "A_wqkv": _A_in["wqkv"],
        "A_wo": _A_in["wo"],
        "B_x": _B_in["x"],
        "B_w1": _B_in["w1"],
        "B_b1": _B_in["b1"],
        "B_w2": _B_in["w2"],
        "B_b2": _B_in["b2"],
    }

def reference(A_x, A_wqkv, A_wo, B_x, B_w1, B_b1, B_w2, B_b2):
    def _A_ref(x, wqkv, wo):
        B, S, D = x.shape
        H = 32; Dh = D // H
        W, dil = 8, 2
        qkv = (lambda x, *d: x.permute(*d))((x @ wqkv).reshape(B, S, 3, H, Dh), 2, 0, 3, 1, 4)
        q, k, v = qkv[0], qkv[1], qkv[2]
        scale = Dh ** -0.5
        pos = torch.arange(S)
        off = torch.arange(W) * dil
        idx = pos[:, None] - off[None, :]
        mask = idx >= 0
        idx_c = torch.where(mask, idx, 0).reshape(-1)
        kg = k[:, :, idx_c, :].reshape(B, H, S, W, Dh)
        vg = v[:, :, idx_c, :].reshape(B, H, S, W, Dh)
        logits = torch.einsum("bhsd,bhswd->bhsw", q, kg) * scale
        logits = torch.where(mask[None, None, :, :], logits, -1e9)
        attn = _softmax(logits, axis=-1)
        o = torch.einsum("bhsw,bhswd->bhsd", attn, vg)
        return (lambda x, *d: x.permute(*d))(o, 0, 2, 1, 3).reshape(B, S, D) @ wo

    def _B_ref(x, w1, b1, w2, b2):
        h = torch.einsum("bsd,df->bsf", x, w1) + b1
        h = _gelu(h)
        return torch.einsum("bsf,fd->bsd", h, w2) + b2

    x = A_x
    h = x + _A_ref(_layernorm(x, axis=-1), A_wqkv, A_wo)
    h2 = h + _B_ref(_layernorm(h, axis=-1), B_w1, B_b1, B_w2, B_b2)
    return h2
```

```python
from runlib import kd, assemble
S, D, F = 2048, 576, 4608
WS_XN, WS_QKV, WS_O, WS_H, WS_HH = 0, 4 << 20, 16 << 20, 20 << 20, 24 << 20
ARG = dict(x=0, wqkv=8, wo=16, bx=24, w1=32, b1=40, w2=48, b2=56, out=64, dbg=72, ws=80)

def srd(a, sreg, arg, off, nbytes):
    a(f"s_load_dwordx2 s[{sreg}:{sreg+1}], s[0:1], {ARG[arg]}")
    return (sreg, off, nbytes)
def srd_fin(a, lst):
    a("s_waitcnt lgkmcnt(0)")
    for sreg, off, nbytes in lst:
        if off: a(f"s_add_u32 s{sreg}, s{sreg}, {off}\ns_addc_u32 s{sreg+1}, s{sreg+1}, 0")
        a(f"s_mov_b32 s{sreg+2}, {nbytes}\ns_mov_b32 s{sreg+3}, 0x20000")
def head(a, name, nwg):
    a(f".globl {name}\n.p2align 8\n.type {name},@function\n{name}:")
    a(f"s_cmp_ge_u32 s2, {nwg}\ns_cbranch_scc0 {name}_go\ns_endpgm\n{name}_go:")

def ln_kernel(name, src, dst):
    o = []; a = o.append
    head(a, name, S)
    l = [srd(a, 4, src[0], src[1], S*D*2), srd(a, 8, dst[0], dst[1], S*D*2)]
    srd_fin(a, l)
    a(f"s_mul_i32 s12, s2, {D*2}\nv_lshlrev_b32 v1, 1, v0")
    for i in range(9): a(f"buffer_load_ushort v{10+i}, v1, s[4:7], s12 offen offset:{128*i}")
    a("s_waitcnt vmcnt(0)")
    for i in range(9): a(f"v_lshlrev_b32 v{10+i}, 16, v{10+i}")
    def wsum(r):
        for m in (1, 2, 4, 8, 16, 32):
            a(f"v_xor_b32 v3, {m}, v0\nv_lshlrev_b32 v3, 2, v3\nds_bpermute_b32 v4, v3, v{r}\ns_waitcnt lgkmcnt(0)\nv_add_f32 v{r}, v{r}, v4")
    a("v_mov_b32 v5, v10")
    for i in range(1, 9): a(f"v_add_f32 v5, v5, v{10+i}")
    wsum(5)
    import struct
    f = lambda x: hex(struct.unpack("<I", struct.pack("<f", x))[0])
    a(f"v_mul_f32 v5, {f(1.0/D)}, v5")
    for i in range(9): a(f"v_sub_f32 v{10+i}, v{10+i}, v5")
    a("v_mul_f32 v6, v10, v10")
    for i in range(1, 9): a(f"v_fmac_f32 v6, v{10+i}, v{10+i}")
    wsum(6)
    a(f"v_mul_f32 v6, {f(1.0/D)}, v6\nv_add_f32 v6, {f(1e-5)}, v6\nv_rsq_f32 v6, v6\ns_nop 1")
    for i in range(9):
        a(f"v_mul_f32 v{10+i}, v{10+i}, v6\nv_cvt_pk_bf16_f32 v{10+i}, v{10+i}, v{10+i}")
        a(f"buffer_store_short v{10+i}, v1, s[8:11], s12 offen offset:{128*i}")
    a("s_endpgm"); a(kd(name, 32))
    return "\n".join(o)

def gemm_kernel(name, A, K, W, N, C, bias=None, res=None, gelu=False):
    import struct
    f = lambda x: hex(struct.unpack("<I", struct.pack("<f", x))[0])
    o = []; a = o.append
    nb = N // 16
    head(a, name, 32 * nb)
    l = [srd(a, 4, A[0], A[1], S*K*2), srd(a, 8, W, 0, K*N*2), srd(a, 12, C[0], C[1], S*N*2)]
    if bias: l.append(srd(a, 16, bias, 0, N*2))
    if res: l.append(srd(a, 20, res[0], res[1], S*N*2))
    srd_fin(a, l)
    a("s_and_b32 s24, s2, 31\ns_lshr_b32 s25, s2, 5")
    a("v_and_b32 v1, 15, v0\nv_lshrrev_b32 v2, 4, v0")
    a(f"s_lshl_b32 s26, s24, 6\nv_add_u32 v3, s26, v1\ns_mov_b32 s27, {K*2}\nv_mul_lo_u32 v3, v3, s27\nv_lshl_add_u32 v3, v2, 4, v3")
    for i in range(1, 4): a(f"v_add_u32 v{3+i}, {16*K*2*i}, v3")
    a(f"s_mov_b32 s27, {8*N*2}\nv_mul_lo_u32 v8, v2, s27\ns_lshl_b32 s28, s25, 4\nv_add_u32 v9, s28, v1\nv_lshl_add_u32 v8, v9, 1, v8")
    for i in range(16): a(f"v_mov_b32 v{40+i}, 0")
    a("s_mov_b32 s29, 0\ns_mov_b32 s30, 0\ns_mov_b32 s31, 0")
    a(f"{name}_loop:")
    for i in range(4): a(f"buffer_load_dwordx4 v[{16+4*i}:{19+4*i}], v{3+i}, s[4:7], s29 offen")
    a("s_mov_b32 s32, s30")
    for t in range(8):
        a(f"buffer_load_ushort v{56+t}, v8, s[8:11], s32 offen")
        a(f"s_add_u32 s32, s32, {N*2}")
    a("s_waitcnt vmcnt(0)")
    for t in range(4): a(f"v_lshl_or_b32 v{32+t}, v{57+2*t}, 16, v{56+2*t}")
    a("s_nop 1")
    for i in range(4): a(f"v_mfma_f32_16x16x32_bf16 v[{40+4*i}:{43+4*i}], v[32:35], v[{16+4*i}:{19+4*i}], v[{40+4*i}:{43+4*i}]")
    a(f"s_add_u32 s29, s29, 64\ns_add_u32 s30, s30, {32*N*2}\ns_add_u32 s31, s31, 1\ns_cmp_lt_u32 s31, {K//32}\ns_cbranch_scc1 {name}_loop")
    a("s_nop 15")
    a(f"v_add_u32 v10, s26, v1\ns_mov_b32 s27, {N*2}\nv_mul_lo_u32 v10, v10, s27\nv_lshlrev_b32 v11, 2, v2\nv_add_u32 v11, s28, v11\nv_lshlrev_b32 v11, 1, v11\nv_add_u32 v10, v10, v11")
    if bias:
        a("buffer_load_dwordx2 v[12:13], v11, s[16:19], 0 offen\ns_waitcnt vmcnt(0)")
        a("v_lshlrev_b32 v60, 16, v12\nv_and_b32 v61, 0xffff0000, v12\nv_lshlrev_b32 v62, 16, v13\nv_and_b32 v63, 0xffff0000, v13")
    for i in range(4):
        a(f"s_mov_b32 s33, {16*N*2*i}")
        if res:
            a("buffer_load_dwordx2 v[12:13], v10, s[20:23], s33 offen\ns_waitcnt vmcnt(0)")
            a("v_lshlrev_b32 v64, 16, v12\nv_and_b32 v65, 0xffff0000, v12\nv_lshlrev_b32 v66, 16, v13\nv_and_b32 v67, 0xffff0000, v13")
        for j in range(4):
            r = 40 + 4*i + j
            if bias: a(f"v_add_f32 v{r}, v{r}, v{60+j}")
            if gelu:
                K0 = -2 * 1.4426950408889634 * 0.7978845608028654
                a(f"v_mul_f32 v14, v{r}, v{r}\nv_mov_b32 v15, {f(K0)}\nv_fmac_f32 v15, {f(K0*0.044715)}, v14\nv_mul_f32 v14, v{r}, v15\nv_exp_f32 v14, v14\ns_nop 0\nv_add_f32 v14, 1.0, v14\nv_rcp_f32 v14, v14\ns_nop 0\nv_mul_f32 v{r}, v{r}, v14")
            if res: a(f"v_add_f32 v{r}, v{r}, v{64+j}")
        a(f"v_cvt_pk_bf16_f32 v12, v{40+4*i}, v{41+4*i}\nv_cvt_pk_bf16_f32 v13, v{42+4*i}, v{43+4*i}")
        a("buffer_store_dwordx2 v[12:13], v10, s[12:15], s33 offen\ns_waitcnt vmcnt(0)")
    a("s_endpgm"); a(kd(name, 72))
    return "\n".join(o)

def attn_kernel(name):
    import struct
    f = lambda x: hex(struct.unpack("<I", struct.pack("<f", x))[0])
    o = []; a = o.append
    head(a, name, S // 2)
    l = [srd(a, 4, "ws", WS_QKV, S*3*D*2), srd(a, 8, "ws", WS_O, S*D*2)]
    srd_fin(a, l)
    a("v_and_b32 v1, 31, v0\nv_lshrrev_b32 v2, 5, v0\ns_lshl_b32 s12, s2, 1\nv_add_u32 v2, s12, v2")
    a(f"v_mul_u32_u24 v3, 36, v1\nv_mul_u32_u24 v4, {3*D*2}, v2\nv_add_u32 v4, v4, v3")
    def ld18(base, voff, off):
        for t in range(9): a(f"buffer_load_dword v{100+t}, v{voff}, s[4:7], 0 offen offset:{off+4*t}")
        a("s_waitcnt vmcnt(0)")
        for t in range(9): a(f"v_lshlrev_b32 v{base+2*t}, 16, v{100+t}\nv_and_b32 v{base+2*t+1}, 0xffff0000, v{100+t}")
    ld18(10, 4, 0)
    for w in range(8):
        a(f"v_subrev_u32 v5, {2*w}, v2\nv_cmp_le_i32 vcc, 0, v5\nv_max_i32 v5, 0, v5\nv_mul_u32_u24 v5, {3*D*2}, v5\nv_add_u32 v{90+w}, v5, v3")
        ld18(30, 90 + w, D*2)
        a(f"v_mul_f32 v{80+w}, v10, v30")
        for t in range(1, 18): a(f"v_fmac_f32 v{80+w}, v{10+t}, v{30+t}")
        a(f"v_mul_f32 v{80+w}, {f(18**-0.5*1.4426950408889634)}, v{80+w}\nv_mov_b32 v6, {f(-1e9)}\nv_cndmask_b32 v{80+w}, v6, v{80+w}, vcc")
    a("v_max_f32 v6, v80, v81")
    for w in range(2, 8): a(f"v_max_f32 v6, v6, v{80+w}")
    for w in range(8): a(f"v_sub_f32 v{80+w}, v{80+w}, v6\nv_exp_f32 v{80+w}, v{80+w}")
    a("s_nop 0\nv_add_f32 v6, v80, v81")
    for w in range(2, 8): a(f"v_add_f32 v6, v6, v{80+w}")
    a("v_rcp_f32 v6, v6")
    for t in range(18): a(f"v_mov_b32 v{50+t}, 0")
    for w in range(8):
        ld18(30, 90 + w, 2*D*2)
        a(f"v_mul_f32 v7, v{80+w}, v6")
        for t in range(18): a(f"v_fmac_f32 v{50+t}, v7, v{30+t}")
    a(f"v_mul_u32_u24 v4, {D*2}, v2\nv_add_u32 v4, v4, v3")
    for t in range(9):
        a(f"v_cvt_pk_bf16_f32 v{10+t}, v{50+2*t}, v{51+2*t}")
        a(f"buffer_store_dword v{10+t}, v4, s[8:11], 0 offen offset:{4*t}")
    a("s_endpgm"); a(kd(name, 112))
    return "\n".join(o)

def simple_kernels():
    ks = [("ln1_kernel", S, ln_kernel("ln1_kernel", ("x", 0), ("ws", WS_XN))),
          ("g1_kernel", 32*3*D//16, gemm_kernel("g1_kernel", ("ws", WS_XN), D, "wqkv", 3*D, ("ws", WS_QKV))),
          ("at_kernel", S//2, attn_kernel("at_kernel")),
          ("g2_kernel", 32*D//16, gemm_kernel("g2_kernel", ("ws", WS_O), D, "wo", D, ("ws", WS_H), res=("x", 0))),
          ("ln2_kernel", S, ln_kernel("ln2_kernel", ("ws", WS_H), ("ws", WS_XN))),
          ("g3_kernel", 32*F//16, gemm_kernel("g3_kernel", ("ws", WS_XN), D, "w1", F, ("ws", WS_HH), bias="b1", gelu=True)),
          ("g4_kernel", 32*D//16, gemm_kernel("g4_kernel", ("ws", WS_HH), F, "w2", D, ("out", 0), bias="b2", res=("ws", WS_H)))]
    return [(n, (g, 64, 0), t) for n, g, t in ks]

def emit(path, ks, order=None):
    order = order or [k[0] for k in ks]
    d = {k[0]: k for k in ks}
    hdr = "".join(f"; @launch kernel={n} grid=({d[n][1][0]},1,1) block=({d[n][1][1]},1,1) lds={d[n][1][2]}\n" for n in order)
    txt = hdr + '.amdgcn_target "amdgcn-amd-amdhsa--gfx950"\n.text\n' + "\n".join(k[2] for k in ks if k[0] in order)
    open(path, "w").write(txt)
    assemble(txt, "x.co", order[0], 11)
if __name__ == "__main__":
    emit("simple.s", simple_kernels())
    print("ok")
```

```python
import struct
def f2h(x): return hex(struct.unpack("<I", struct.pack("<f", x))[0])
def vr(b, n=4): return f"v[{b}:{b+n-1}]" if n > 1 else f"v{b}"
def ar(b, n=4): return f"a[{b}:{b+n-1}]" if n > 1 else f"a{b}"
def sr(b, n=4): return f"s[{b}:{b+n-1}]" if n > 1 else f"s{b}"

class E:
    def __init__(self):
        self.o = []; self.vm = []; self.lg = []; self.nlab = 0
    def a(self, t):
        for l in t.split("\n"):
            l = l.strip()
            if l: self.o.append(l)
    def vmem(self, t, tag=None): self.a(t); self.vm.append(tag)
    def lds(self, t, tag=None): self.a(t); self.lg.append(tag)
    def _n(self, lst, tags):
        idx = max((i for i, t in enumerate(lst) if t in tags), default=-1)
        return idx
    def need(self, vm=(), lg=()):
        if isinstance(vm, (str, tuple)) and not isinstance(vm, list): vm = [vm] if vm != () else []
        if isinstance(lg, (str, tuple)) and not isinstance(lg, list): lg = [lg] if lg != () else []
        parts = []
        i = self._n(self.vm, vm)
        if i >= 0:
            n = min(len(self.vm) - 1 - i, 63); parts.append(f"vmcnt({n})"); self.vm = self.vm[len(self.vm) - n:] if n else []
        i = self._n(self.lg, lg)
        if i >= 0:
            n = min(len(self.lg) - 1 - i, 15); parts.append(f"lgkmcnt({n})"); self.lg = self.lg[len(self.lg) - n:] if n else []
        if parts: self.a("s_waitcnt " + " ".join(parts))
        return bool(parts)
    def drain(self, vm=True, lg=True):
        p = []
        if vm: p.append("vmcnt(0)"); self.vm = []
        if lg: p.append("lgkmcnt(0)"); self.lg = []
        self.a("s_waitcnt " + " ".join(p))
    def lab(self, p="L"):
        self.nlab += 1; return f"{p}_{self.nlab}"
    def text(self): return "\n".join(("" if l.endswith(":") or l.startswith(".") else "    ") + l for l in self.o) + "\n"
```

```python
import sys, math
from emit import *
NAME = "sequential_preLN__sliding_local_dilated__dense_activation_gelu__prompt_kernel"
WS_FLAG, WS_O, WS_H, WS_AUG, WS_STR, WS_P, WS_DBG = 0, 0x100000, 0x400000, 0x700000, 0x800000, 0x1400000, 0x3000000
STRSZ = 324 * 1024
OOB = 0x40000000
X, WQ, WO, W1, W2, WS, OUT, DBG, B1, B2 = 4, 8, 12, 16, 20, 24, 28, 32, 36, 40
sI, sJ, sW = 44, 45, 46
sIW = 47
sFL = 48
L_X = 0; L_RG = 92160; RGSZ = 23040; L_ST = 161280
L_WO = 0
L_H = 0; L_AUG = 73728; L_HT = 86016; L_EX1 = 57344; L_EX2 = 86016
LDS_BYTES = 163840
vLANE, vL16 = 1, 2
vAA, vAB, vA0, vB0, vAS, vOL, vTR = 3, 4, 5, 6, 7, 8, 9
vWO, vWO8, vRES = 228, 237, 240
LOG2E = 1.4426950408889634
SPIN = 1 << 18

class Cfg:
    nsl = 2; stop = 99; stamps = False; codepf = True; touch1 = True; touch2 = True; touch_wo = True

def stamp(e, cfg, k):
    if cfg.stamps:
        e.a(f"s_memrealtime s[62:63]\ns_waitcnt lgkmcnt(0)\ns_mov_b32 s{86+k}, s62"); e.lg = []

def poll(e, srd, soff, voff_expr_lanes, want, tmpv=(10, 11, 12)):
    lanes = voff_expr_lanes
    l0, l1 = e.lab("poll"), e.lab("pout")
    e.a(f"v_lshlrev_b32 v{tmpv[0]}, 2, v{vLANE}\ns_mov_b32 s49, 0\ns_mov_b64 exec, {hex((1 << lanes) - 1)}")
    e.a(f"{l0}:")
    e.a(f"buffer_load_dword v{tmpv[1]}, v{tmpv[0]}, {sr(srd)}, {soff} offen sc1")
    e.a(f"s_add_u32 s49, s49, 1\ns_waitcnt vmcnt(0)\nv_cmp_ne_u32 vcc, {want}, v{tmpv[1]}\ns_cmp_lt_u32 s49, {SPIN}")
    e.a(f"s_cbranch_scc0 {l1}\ns_cbranch_vccnz {l0}\n{l1}:\ns_mov_b64 exec, -1")
    e.vm = []

def signal(e, kind):
    e.drain(vm=True, lg=False)
    e.a(f"s_lshl_b32 s49, s{sJ}, 2\nv_mov_b32 v10, s49\nv_mov_b32 v11, 1\ns_mov_b64 exec, 1")
    e.vmem(f"buffer_store_dword v11, v10, {sr(WS)}, s{sFL} offen offset:{kind*512} sc1")
    e.a("s_mov_b64 exec, -1")

def wait_flags(e, kind):
    e.a(f"s_add_u32 s50, s{sFL}, {kind*512}")
    poll(e, WS, "s50", 8, 1)

def pcu(e, tconst=None, treg=None, off=0):
    if treg is None:
        e.a(f"v_add_u32 v10, {64*tconst}, v{vLANE}\nv_add_u32 v12, {1024*tconst - off}, v{vL16}")
    else:
        e.a(f"s_lshl_b32 s49, {treg}, 6\nv_add_u32 v10, s49, v{vLANE}\nv_lshlrev_b32 v12, 4, v10")
    e.a("v_mul_u32_u24 v11, 7282, v10\nv_lshrrev_b32 v11, 16, v11\nv_mad_i32_i24 v12, v11, s51, v12")

def prologue(e, cfg):
    e.a(f"s_cmp_ge_u32 s2, 256\ns_cbranch_scc0 L_go\ns_endpgm\nL_go:")
    if cfg.stamps: e.a("s_memrealtime s[60:61]")
    for r, off in ((X, 0), (WQ, 8), (WS, 80), (DBG, 72), (W1, 32), (W2, 48), (WO, 16), (OUT, 64), (B1, 40), (B2, 56)):
        e.a(f"s_load_dwordx2 s[{r}:{r+1}], s[0:1], {off}")
    e.a(f"v_lshrrev_b32 v10, 6, v0\nv_and_b32 v{vLANE}, 63, v0\nv_readfirstlane_b32 s{sW}, v10\nv_lshlrev_b32 v{vL16}, 4, v{vLANE}")
    if cfg.codepf:
        e.a("s_getpc_b64 s[52:53]\nL_pc:\ns_lshr_b32 s49, s2, 3\ns_lshl_b32 s49, s49, 11")
        e.a(f"v_lshrrev_b32 v11, 4, v0\nv_lshlrev_b32 v11, 7, v11\nv_add_u32 v11, s49, v11\nv_min_u32 v11, L_end-L_pc-4, v11")
        e.a("global_load_dword v255, v11, s[52:53]")
    ln = int(math.log2(cfg.nsl))
    e.a(f"s_and_b32 s{sJ}, s2, {8//cfg.nsl-1}\ns_lshl_b32 s{sJ}, s{sJ}, {ln}\ns_lshr_b32 s{sI}, s2, 3\ns_and_b32 s49, s{sI}, {cfg.nsl-1}\ns_add_u32 s{sJ}, s{sJ}, s49")
    e.a(f"s_and_b32 s49, s2, 7\ns_lshr_b32 s49, s49, {3-ln}\ns_lshl_b32 s49, s49, {5-ln}\ns_lshr_b32 s{sI}, s{sI}, {ln}\ns_add_u32 s{sI}, s{sI}, s49")
    for r, n in ((X, 2359296), (WQ, 1990656), (WS, 0x4000000), (DBG, 256), (W1, 5308416), (W2, 5308416), (WO, 663552), (OUT, 2359296), (B1, 9216), (B2, 1152)):
        e.a(f"s_mov_b32 s{r+2}, {n}\ns_mov_b32 s{r+3}, 0x20000")
    e.a(f"s_lshl_b32 s{sIW}, s{sI}, 2\ns_add_u32 s{sIW}, s{sIW}, s{sW}")
    e.a(f"s_mul_i32 s{sFL}, s{sI}, 1536\ns_lshl_b32 s49, s{sW}, 7\ns_add_u32 s{sFL}, s{sFL}, s49")
    e.a("s_movk_i32 s51, -144")
    e.a(f"v_lshrrev_b32 v10, 3, v{vLANE}\nv_and_b32 v11, 6, v10\nv_xor_b32 v11, v11, v{vLANE}\nv_and_b32 v11, 7, v11\nv_lshlrev_b32 v11, 4, v11")
    e.a("v_mul_u32_u24 v10, 1152, v10\nv_add_u32 v15, v10, v11")
    e.a(f"v_lshrrev_b32 v10, 2, v{vLANE}\nv_mul_u32_u24 v10, 144, v10\nv_and_b32 v11, 3, v{vLANE}\nv_lshl_add_u32 v{vTR}, v11, 3, v10")
    e.a(f"s_mul_i32 s54, s{sI}, {64*1152}\ns_sub_u32 s54, s54, {16*1152}")

def x_octet(e, t):
    if t is None:
        e.a("s_mov_b32 s55, 0")
    else:
        e.a(f"s_add_u32 s55, s{sJ}, {t}\ns_sub_u32 s56, s55, 9\ns_cselect_b32 s55, s55, s56\ns_add_u32 s55, s55, 1")
    e.a(f"s_lshl_b32 m0, s55, 10\ns_mul_i32 s55, s55, 9216\ns_add_i32 s55, s55, s54\ns_cmp_lt_i32 s55, 0\ns_cselect_b32 s55, {OOB}, s55")
    for L in range(9):
        e.vmem(f"buffer_load_dwordx4 v15, {sr(X)}, s55 offen offset:{128*L} lds", "x")
        if L < 8: e.a(f"s_add_u32 m0, m0, {10240-128}\ns_nop 0")

def xfrag_addr(e, d0, d1):
    e.a(f"v_bfe_u32 v10, v{vLANE}, 3, 1\nv_and_b32 v11, 7, v{vLANE}\nv_lshlrev_b32 v11, 7, v11\nv_lshl_or_b32 v11, v10, 10, v11")
    e.a(f"v_lshrrev_b32 v10, 4, v{vLANE}\nv_and_b32 v12, 6, v{vLANE}\nv_xor_b32 v10, v10, v12\nv_lshl_or_b32 v{d0}, v10, 4, v11\nv_xor_b32 v{d1}, 64, v{d0}")

def precompute(e):
    e.a("s_movk_i32 s52, 1152")
    for t in range(9):
        pcu(e, tconst=t, off=1024*(t & 3))
        e.a("v_and_b32 v13, 3, v11\nv_lshrrev_b32 v14, 4, v11\nv_lshl_or_b32 v13, v14, 2, v13\nv_bfe_u32 v14, v11, 2, 2\nv_mad_u32_u24 v13, v14, 18, v13")
        e.a(f"v_bfe_u32 v14, v11, 2, 1\nv_lshl_add_u32 v13, v14, 1, v13\nv_mad_u32_u24 v{vWO+t}, v13, s52, v12")
    for n in range(3):
        if n == 0: pcu(e, treg=f"s{sW}")
        elif n == 1: e.a(f"s_add_u32 s53, s{sW}, 4"); pcu(e, treg="s53")
        else: pcu(e, tconst=8)
        e.a("v_lshrrev_b32 v13, 5, v11\nv_bfe_u32 v14, v11, 2, 2\nv_lshl_or_b32 v13, v13, 2, v14\nv_bfe_u32 v14, v11, 4, 1\nv_lshl_or_b32 v13, v13, 1, v14")
        e.a(f"v_and_or_b32 v14, v11, 3, 16\nv_mad_u32_u24 v13, v13, 36, v14\nv_mad_u32_u24 v{vWO8+n}, v13, s52, v12")
    e.a(f"v_lshrrev_b32 v10, 4, v{vLANE}\nv_and_b32 v11, 1, v10\nv_mul_u32_u24 v12, 72, v10\nv_add_u32 v12, {L_RG}, v12")
    e.a(f"v_lshl_add_u32 v{vA0}, v11, 3, v12\nv_xor_b32 v11, 1, v11\nv_lshl_add_u32 v{vB0}, v11, 6, v12")
    e.a(f"v_and_b32 v11, 15, v{vLANE}\ns_lshl_b32 s49, s{sW}, 4\ns_add_u32 s49, s49, 2\nv_add_u32 v12, s49, v11")
    e.a(f"v_mul_u32_u24 v13, 288, v12\nv_add_u32 v{vAA}, v{vA0}, v13\nv_add_u32 v{vAB}, v{vB0}, v13")
    e.a(f"v_lshlrev_b32 v12, 4, v12\nv_add_u32 v{vAS}, {L_ST}, v12")
    e.a(f"v_lshlrev_b32 v11, 4, v11\nv_lshl_add_u32 v{vOL}, v10, 2, v11")

def residual_read(e):
    e.a(f"v_bfe_u32 v10, v{vLANE}, 3, 1\ns_lshl_b32 s49, s{sW}, 1\ns_add_u32 s49, s49, 2\nv_add_u32 v10, s49, v10")
    e.a(f"v_and_b32 v11, 7, v{vLANE}\nv_lshlrev_b32 v11, 7, v11\nv_lshl_or_b32 v250, v10, 10, v11")
    e.a(f"v_and_b32 v251, 6, v{vLANE}\nv_lshlrev_b32 v251, 4, v251")
    e.a(f"v_lshrrev_b32 v10, 4, v{vLANE}\ns_mul_i32 s49, s{sJ}, 144\nv_lshl_add_u32 v252, v10, 3, s49\ns_movk_i32 s52, 10240")
    for b in range(5):
        e.a(f"v_add_u32 v10, {32*b}, v252\nv_lshrrev_b32 v11, 7, v10\nv_and_b32 v10, 0x7f, v10\nv_xor_b32 v10, v10, v251\nv_add_u32 v10, v10, v250\nv_mad_u32_u24 v10, v11, s52, v10")
        e.lds(f"ds_read_b64 {vr(vRES+2*b, 2)}, v10", "res")

def phase1_gemm(e, cfg):
    vA, vB, vWQ, vT, vXc, vX = 16, 56, 96, 105, 106, 108
    e.a("s_movk_i32 s52, 3456")
    for t in range(9):
        pcu(e, tconst=t, off=1024*(t & 3))
        e.a("v_and_b32 v13, 35, v11\nv_and_b32 v14, 12, v11\nv_lshl_or_b32 v13, v14, 1, v13\nv_bfe_u32 v14, v11, 4, 1\nv_lshl_or_b32 v13, v14, 2, v13")
        e.a(f"v_mad_u32_u24 v{vWQ+t}, v13, s52, v12")
    e.a(f"s_add_u32 s57, s{sI}, s{sJ}\ns_mul_i32 s49, s57, 57\ns_lshr_b32 s49, s49, 9\ns_mul_i32 s49, s49, 9\ns_sub_u32 s57, s57, s49\ns_mov_b32 s64, s57")
    e.a(f"s_mul_i32 s58, s{sW}, 1152\ns_mul_i32 s49, s{sJ}, 144\ns_add_u32 s58, s58, s49")
    e.a(f"s_mul_i32 s59, s{sW}, {RGSZ}\ns_add_u32 s59, s59, {L_RG}\ns_add_u32 s53, s{sW}, 4")
    e.a("s_waitcnt lgkmcnt(0)")
    if cfg.stamps: e.a("s_mov_b32 s86, s60")
    stamp(e, cfg, 1)
    x_octet(e, f"s{sW}"); x_octet(e, "s53")
    def dma(t): return f"buffer_load_dwordx4 v{vWQ+t}, {sr(WQ)}, s65 offen offset:{1024*(t&3)} lds"
    def next_slab():
        return f"s_mul_i32 s65, s57, {64*3456}\ns_add_u32 s65, s65, s58\ns_add_u32 s57, s57, 1\ns_cmp_eq_u32 s57, 9\ns_cselect_b32 s57, 0, s57"
    for slot in range(2):
        e.a(next_slab())
        for t in range(9):
            if t % 4 == 0: e.a(f"s_add_u32 m0, s59, {slot*9216 + 1024*t}\ns_nop 0")
            e.vmem(dma(t), "w")
    for r in range(100): e.a(f"v_accvgpr_write_b32 a{r}, 0")
    xfrag_addr(e, vXc, vXc + 1)
    e.a(f"v_add_u32 v{vT}, s59, v{vTR}\nv_lshlrev_b32 v110, 1, v{vT}\nv_add_u32 v110, 9216, v110")
    e.a(f"s_mul_i32 s49, s64, 10240\nv_add_u32 v{vX}, s49, v{vXc}\nv_add_u32 v{vX+1}, s49, v{vXc+1}")
    precompute(e)
    e.a("s_waitcnt vmcnt(18)\ns_barrier")
    stamp(e, cfg, 2)
    residual_read(e)
    def reads(buf, h2):
        r = []
        for b in range(5):
            for hi in range(2):
                r.append(f"ds_read_b64_tr_b16 {vr(vA+20*buf+4*b+2*hi, 2)}, v{vT} offset:{(32*h2+16*hi)*144+32*b}")
            r.append(f"ds_read_b128 {vr(vB+20*buf+4*b)}, v{vX+h2} offset:{2048*b}")
        return r
    e.a("s_waitcnt vmcnt(13)")
    e.a("\n".join(reads(0, 0)))
    e.a(f"s_mov_b32 s60, s59\ns_mov_b32 s66, 0\ns_add_u32 s67, s59, s59\ns_add_u32 s67, s67, 9216")
    e.a(".p2align 3\nL_p1loop:")
    for half in range(2):
        gaps = [[] for _ in range(25)]
        if half == 0:
            e.a(next_slab())
            e.a(f"s_cmp_lt_u32 s66, 7\ns_cselect_b32 s65, s65, {OOB}\ns_mov_b32 m0, s60")
            for t in range(4): gaps[t].append(dma(t))
            gaps[4].append("s_add_u32 m0, s60, 4096")
            gaps[5].append("s_waitcnt vmcnt(13)")
            rd = reads(1, 1)
        else:
            for t in range(4, 8): gaps[t-4].append(dma(t))
            gaps[3].append("s_add_u32 m0, s60, 8192")
            gaps[4].append(dma(8))
            gaps[5].append("s_waitcnt vmcnt(13)")
            rd = reads(0, 0)
        for n, r in enumerate(rd): gaps[6 + n // 2].append(r)
        if half == 0:
            gaps[15] += ["s_add_u32 s64, s64, 1", "s_cmp_eq_u32 s64, 9"]
            gaps[16] += ["s_cselect_b32 s64, 0, s64", "s_mul_i32 s49, s64, 10240"]
            gaps[17] += [f"v_add_u32 v{vX}, s49, v{vXc}", f"v_add_u32 v{vX+1}, s49, v{vXc+1}"]
            gaps[18] += [f"v_sub_u32 v{vT}, v110, v{vT}"]
        else:
            gaps[15] += ["s_sub_u32 s60, s67, s60", "s_add_u32 s66, s66, 1"]
            gaps[24] += ["s_cmp_lt_u32 s66, 9"]
        e.a("s_waitcnt lgkmcnt(0)")
        n = 0
        for b in range(5):
            for mb in range(5):
                acc = ar(4*(5*b+mb))
                e.a(f"v_mfma_f32_16x16x32_bf16 {acc}, {vr(vA+20*half+4*b)}, {vr(vB+20*half+4*mb)}, {acc}")
                e.a("\n".join(gaps[n])); n += 1
    e.a("s_cbranch_scc1 L_p1loop")
    stamp(e, cfg, 3)
    e.a(f"v_and_b32 v10, 15, v{vLANE}\nv_mul_u32_u24 v10, 288, v10\nv_and_b32 v11, 48, v{vLANE}\nv_add3_u32 v10, v10, v11, s59")
    e.drain()
    for b in range(5):
        if b == 4: e.a("s_mov_b32 exec_hi, 0")
        for mb in range(5):
            e.lds(f"ds_write_b128 v10, {ar(4*(5*b+mb))} offset:{4608*mb+64*b}")
    e.a("s_mov_b32 exec_hi, -1")

def phase1_helper(e, cfg):
    vR, vO = 16, 208
    vS1, vS2, vFull, vSplit, vD0, vD1, vBi = 224, 225, 226, 227, 228, 229, 230
    vX0, vX1 = 233, 234
    e.a("v_mov_b32 v16, 0\nv_mov_b32 v17, 0\nv_mov_b32 v18, 0\nv_mov_b32 v19, 0")
    e.a(f"s_mul_i32 s57, s{sI}, 1536")
    e.a("s_waitcnt lgkmcnt(0)")
    if cfg.stamps: e.a("s_mov_b32 s86, s60")
    stamp(e, cfg, 1)
    x_octet(e, None)
    e.a(f"s_cmp_eq_u32 s{sJ}, 0\ns_cbranch_scc0 L_h_nozero")
    e.a(f"buffer_store_dwordx4 v[16:19], v{vL16}, {sr(WS)}, s57 offen sc1")
    e.a(f"buffer_store_dwordx4 v[16:19], v{vL16}, {sr(WS)}, s57 offen offset:512 sc1")
    e.a("L_h_nozero:")
    x_octet(e, 3); x_octet(e, 7); x_octet(e, 8)
    e.a(f"v_and_b32 v10, 7, v{vLANE}\nv_lshlrev_b32 v10, 4, v10\nv_lshrrev_b32 v11, 3, v{vLANE}")
    e.a(f"v_mul_u32_u24 v12, {8*9216}, v11\nv_add_u32 v{vS1}, v12, v10")
    e.a("v_and_b32 v12, 1, v11\nv_and_b32 v13, 6, v11\nv_lshl_or_b32 v13, v12, 5, v13")
    e.a(f"v_mul_u32_u24 v13, 1152, v13\nv_add_u32 v{vS2}, v13, v10")
    e.a(f"v_lshl_or_b32 v10, v12, 9, v10\nv_lshrrev_b32 v12, 1, v11\nv_lshl_or_b32 v{vFull}, v12, 10, v10")
    e.a(f"v_and_b32 v12, 1, v12\nv_mul_u32_u24 v12, {STRSZ}, v12\nv_lshrrev_b32 v13, 2, v11\nv_lshl_or_b32 v10, v13, 10, v10\nv_add_u32 v{vSplit}, v12, v10")
    e.a(f"v_and_b32 v10, 7, v{vLANE}\nv_lshl_add_u32 v10, v10, 3, v11\nv_lshlrev_b32 v235, 1, v10\nv_lshlrev_b32 v236, 1, v{vLANE}")
    e.a(f"v_and_b32 v10, 15, v{vLANE}\nv_mov_b32 v12, 0x3f803f80")
    for i in range(8):
        e.a(f"v_cmp_eq_u32 vcc, {4*(i>>1)+(i&1)}, v10\ns_nop 1\nv_cndmask_b32 v11, 0, v12, vcc")
        for z in range(4): e.a(f"v_accvgpr_write_b32 a{64+4*i+z}, v11")
    for z in range(4): e.a(f"v_accvgpr_write_b32 a{60+z}, v12")
    for r in range(40): e.a(f"v_accvgpr_write_b32 a{r}, 0")
    xfrag_addr(e, vX0, vX1)
    e.a(f"v_lshrrev_b32 v10, 2, v{vLANE}\nv_mul_u32_u24 v10, 10240, v10\nv_and_b32 v11, 3, v{vLANE}\nv_lshl_add_u32 v10, v11, 5, v10")
    e.a("s_waitcnt vmcnt(0)\ns_mov_b32 exec_hi, 0xf")
    e.a("ds_write_b128 v10, a[60:63]\nds_write_b128 v10, a[60:63] offset:16\ns_mov_b32 exec_hi, -1")
    e.a(f"s_cmp_eq_u32 s{sJ}, 0\ns_cbranch_scc0 L_h_noready")
    e.a(f"s_lshl_b32 s49, s{sI}, 2\nv_mov_b32 v11, 1\nv_mov_b32 v12, s49\ns_mov_b64 exec, 1")
    e.a(f"buffer_store_dword v11, v12, {sr(DBG)}, 0 offen sc1\ns_mov_b64 exec, -1")
    e.a("L_h_noready:")
    e.a("s_waitcnt lgkmcnt(0)\ns_barrier")
    stamp(e, cfg, 2)
    order = [0, 3, 1, 4, 2, 5]
    for n in order:
        w1 = n < 3; t = n % 3
        if w1: e.a(f"s_add_u32 s49, s{sI}, {32*t}")
        else: e.a(f"s_sub_u32 s49, {31+32*t}, s{sI}")
        e.a(f"s_mul_i32 s{64+2*n}, s49, 57\ns_lshr_b32 s{64+2*n}, s{64+2*n}, 9\ns_mul_i32 s50, s{64+2*n}, 9\ns_sub_u32 s{65+2*n}, s49, s50")
        if t == 2: e.a(f"s_cmp_lt_u32 s49, 81\ns_cbranch_scc0 L_h_ld{n}")
        e.a(f"s_lshl_b32 s50, s{64+2*n}, 7")
        if w1:
            e.a(f"s_mul_i32 s52, s{sJ}, 1152\ns_add_u32 s52, s52, s50\ns_mul_i32 s50, s{65+2*n}, {64*9216}\ns_add_u32 s50, s50, s52")
            for r in range(8):
                e.a(f"buffer_load_dwordx4 {vr(vR+32*n+4*r)}, v{vS1}, {sr(W1)}, s50 offen")
                if r < 7: e.a("s_add_u32 s50, s50, 9216")
            e.a(f"buffer_load_ushort v{vBi+n}, v235, {sr(B1)}, s52 offen")
        else:
            e.a(f"s_mul_i32 s52, s{sJ}, {576*1152}\ns_add_u32 s50, s50, s52\ns_mul_i32 s52, s{65+2*n}, {64*1152}\ns_add_u32 s50, s50, s52")
            for r in range(4):
                e.a(f"buffer_load_dwordx4 {vr(vR+32*n+4*r)}, v{vS2}, {sr(W2)}, s50 offen")
                e.a(f"buffer_load_dwordx4 {vr(vR+32*n+4*r+16)}, v{vS2}, {sr(W2)}, s50 offen offset:1152")
                if r < 3: e.a("s_add_u32 s50, s50, 9216")
        if t == 2: e.a(f"L_h_ld{n}:")
    if cfg.touch_wo:
        nsh = 32 // cfg.nsl; rows = 576 // nsh
        e.a(f"s_and_b32 s49, s{sI}, {nsh-1}\ns_mul_i32 s49, s49, {rows*1152}\ns_mul_i32 s50, s{sJ}, 144\ns_add_u32 s49, s49, s50")
        for k in range((rows + 63) // 64):
            e.a(f"v_add_u32 v10, {64*k}, v{vLANE}\nv_min_u32 v10, {rows-1}, v10\nv_mul_u32_u24 v10, 1152, v10")
            e.a(f"buffer_load_dword v254, v10, {sr(WO)}, s49 offen\nbuffer_load_dword v254, v10, {sr(WO)}, s49 offen offset:140")
    def rds(buf, h2): return [f"ds_read_b128 {ar(96+20*buf+4*mb)}, v{vX0+h2} offset:{2048*mb}" for mb in range(5)]
    e.a("\n".join(rds(0, 0)))
    e.a("s_mov_b32 s49, 0\nL_h_stat:")
    for half in range(2):
        e.a("s_waitcnt lgkmcnt(0)")
        rd = rds(1 - half, 1 - half)
        for mb in range(5):
            f = ar(96 + 20*half + 4*mb)
            e.a(f"v_mfma_f32_16x16x32_bf16 {ar(4*mb)}, {f}, {f}, {ar(4*mb)}")
            e.a(rd[mb])
            e.a(f"v_mfma_f32_16x16x32_bf16 {ar(20+4*mb)}, a[60:63], {f}, {ar(20+4*mb)}")
        if half == 0: e.a(f"v_add_u32 v{vX0}, 10240, v{vX0}\nv_add_u32 v{vX1}, 10240, v{vX1}")
    e.a("s_add_u32 s49, s49, 1\ns_cmp_lt_u32 s49, 9\ns_cbranch_scc1 L_h_stat")
    e.a(f"v_and_b32 v10, 1, v{vLANE}\nv_cmp_eq_u32 s[52:53], 1, v10\nv_and_b32 v10, 2, v{vLANE}\nv_cmp_eq_u32 s[56:57], 2, v10")
    e.a(f"v_and_b32 v10, 15, v{vLANE}\nv_lshlrev_b32 v10, 4, v10\nv_add_u32 v10, {L_ST}, v10")
    e.a(f"s_cmp_eq_u32 s{sI}, 0\ns_cselect_b32 s49, {f2h(-1e9*LOG2E)}, 0\ns_waitcnt lgkmcnt(0)")
    for mb in range(5):
        for z in range(4): e.a(f"v_accvgpr_read_b32 v{vO+z}, a{4*mb+z}")
        e.a(f"v_accvgpr_read_b32 v{vO+4}, a{20+4*mb}")
        e.a(f"v_cndmask_b32 v{vO}, v{vO}, v{vO+1}, s[52:53]\nv_cndmask_b32 v{vO+2}, v{vO+2}, v{vO+3}, s[52:53]\nv_cndmask_b32 v{vO}, v{vO}, v{vO+2}, s[56:57]")
        o = vO + 8 + 4*(mb & 1)
        e.a(f"v_mul_f32 v{o}, {f2h(-1.0/576)}, v{vO+4}\nv_mul_f32 v{vO}, {f2h(1.0/576)}, v{vO}\nv_fma_f32 v{vO}, -v{o}, v{o}, v{vO}")
        e.a(f"v_max_f32 v{vO}, 0, v{vO}\nv_add_f32 v{vO}, {f2h(1e-5)}, v{vO}\nv_rsq_f32 v{o+1}, v{vO}")
        e.a(f"v_mov_b32 v{o+2}, {'s49' if mb == 0 else 0}\nv_mov_b32 v{o+3}, 0")
        e.a("s_mov_b32 exec_lo, 0x00f0000f\ns_mov_b32 exec_hi, 0xf0000f00")
        e.a(f"ds_write_b128 v10, {vr(o)} offset:{256*mb}\ns_mov_b64 exec, -1")
    stamp(e, cfg, 3)
    e.a(f"s_mov_b32 s58, 0x05040100\ns_mov_b32 s59, 0x07060302\ns_mul_i32 s60, s{sJ}, {4*STRSZ}\ns_add_u32 s60, s60, {WS_STR}")
    e.a(f"v_and_b32 v10, 8, v{vLANE}\nv_cmp_eq_u32 s[56:57], 8, v10")
    e.a("s_waitcnt vmcnt(0)")
    for n in order:
        w1 = n < 3; t = n % 3; P, kc = 64 + 2*n, 65 + 2*n
        if t == 2: e.a(f"s_cmp_lt_u32 s{P}, 9\ns_cbranch_scc0 L_h_sh{n}")
        e.a(f"s_cmp_eq_u32 s{P}, {0 if w1 else 8}\ns_cbranch_scc0 L_h_full{n}")
        e.a(f"s_lshl_b32 s52, s{kc}, 11\ns_add_u32 s52, s52, s60")
        if not w1: e.a(f"s_add_u32 s52, s52, {198*1024}")
        e.a(f"s_add_u32 s53, s52, {2*STRSZ}\nv_mov_b32 v{vD0}, v{vSplit}\nv_mov_b32 v{vD1}, v{vSplit}\ns_branch L_h_go{n}")
        e.a(f"L_h_full{n}:\ns_lshl_b32 s52, s{kc}, 12\ns_add_u32 s52, s52, s60")
        if w1:
            e.a(f"s_sub_u32 s49, s{P}, 1\ns_and_b32 s50, s49, 1\ns_mul_i32 s50, s50, {2*STRSZ}\ns_lshr_b32 s49, s49, 1\ns_mul_i32 s49, s49, {36*1024}")
            e.a(f"s_add_u32 s52, s52, s50\ns_add_u32 s52, s52, s49\ns_add_u32 s52, s52, {18*1024}\ns_add_u32 s53, s52, {STRSZ}")
            e.a(f"v_mov_b32 v{vD0}, v{vFull}\nv_xor_b32 v{vD1}, 1024, v{vFull}")
        else:
            e.a(f"s_lshr_b32 s49, s{P}, 1\ns_mul_i32 s50, s49, {STRSZ}\ns_add_u32 s52, s52, s50\ns_and_b32 s49, s49, 1\ns_lshl_b32 s49, s49, 10")
            e.a(f"v_xor_b32 v{vD0}, s49, v{vFull}\nv_xor_b32 v{vD1}, s49, v{vFull}")
            e.a(f"s_and_b32 s49, s{P}, 1\ns_cselect_b32 s49, {90*1024}, 0\ns_cselect_b32 s50, {72*1024}, 0")
            e.a(f"s_add_u32 s53, s52, s50\ns_add_u32 s53, s53, {216*1024}\ns_add_u32 s52, s52, s49\ns_add_u32 s52, s52, {162*1024}")
        e.a(f"L_h_go{n}:")
        for i in range(8):
            o = vO + 4*(i & 3)
            for z in range(4):
                e.a(f"v_perm_b32 v{o+z}, v{vR+32*n+4*(2*z+1)+(i>>1)}, v{vR+32*n+4*(2*z)+(i>>1)}, s{58+(i&1)}")
            e.a(f"buffer_store_dwordx4 {vr(o)}, v{vD0+(i>>2)}, {sr(WS)}, s{52+(i>>2)} offen offset:{128*(i&3)} sc1")
            if w1:
                e.a(f"s_nop 0\nv_mfma_f32_16x16x32_bf16 v[12:15], {ar(64+4*i)}, {vr(o)}, {'0' if i == 0 else 'v[12:15]'}")
        if w1:
            e.a(f"s_mul_i32 s49, s{P}, 10\ns_add_u32 s50, s49, s{kc}\ns_lshl_b32 s50, s50, 7\ns_mul_i32 s52, s{sJ}, 12288\ns_add_u32 s52, s52, {WS_AUG}\ns_add_u32 s50, s50, s52\ns_nop 2")
            e.a("v_add_f32_dpp v10, v12, v12 row_ror:8 row_mask:0xf bank_mask:0xf\nv_add_f32_dpp v11, v13, v13 row_ror:8 row_mask:0xf bank_mask:0xf")
            e.a("v_cndmask_b32 v10, v10, v11, s[56:57]\nv_cvt_pk_bf16_f32 v10, v10, v10")
            e.a(f"buffer_store_short v10, v236, {sr(WS)}, s50 offen sc1")
            e.a(f"s_cmp_eq_u32 s{kc}, 0\ns_cbranch_scc0 L_h_nb{n}")
            e.a(f"buffer_store_short v{vBi+n}, v236, {sr(WS)}, s50 offen offset:{9*128} sc1\nL_h_nb{n}:")
        if t == 2: e.a(f"L_h_sh{n}:")
    precompute(e)
    residual_read(e)
    e.a(f"s_lshl_b32 s49, s{sJ}, 2\ns_add_u32 s49, s49, 128\nv_mov_b32 v11, 1\nv_mov_b32 v12, s49\ns_waitcnt vmcnt(0)\ns_mov_b64 exec, 1")
    e.a(f"buffer_atomic_add v11, v12, {sr(DBG)}, 0 offen sc1\ns_mov_b64 exec, -1")
    e.a(f"s_lshl_b32 s50, s{sI}, 2")
    poll(e, DBG, "s50", 1, 1)

def attention(e, cfg):
    Q, CQ, CK, CV, ST, BF, LG, O, T = 16, 34, 52, 70, 88, 120, 192, 200, 218
    def bf(n): return BF + 18*n
    def rdvec(dst, c, t, tag):
        a, b, off = (vA0, vB0, c*RGSZ) if t is None else (vAA, vAB, c*RGSZ + (7-t)*576)
        for i in range(4): e.lds(f"ds_read_b128 {vr(dst+4*i)}, v{a} offset:{off+16*i}", tag)
        e.lds(f"ds_read_b64 {vr(dst+16, 2)}, v{b} offset:{off}", tag)
    def rdst(t): e.lds(f"ds_read_b128 {vr(ST+4*t)}, v{vAS} offset:{(7-t)*32}", f"st{t}")
    dm = []
    for sl in range(2):
        for t in range(9):
            pre = ""
            if t == 0: pre += f"s_add_u32 s53, s52, {sl*72*1152}\n"
            if t % 4 == 0: pre += f"s_add_u32 m0, s54, {sl*9216 + 1024*t}\ns_nop 0\n"
            dm.append(pre + f"buffer_load_dwordx4 v{vWO+t}, {sr(WO)}, s53 offen offset:{1024*(t&3)} lds")
    for n in range(2):
        dm.append(f"s_add_u32 m0, s56, {L_WO + 8*9216 + 4096*n}\ns_nop 0\nbuffer_load_dwordx4 v{vWO8+n}, {sr(WO)}, s55 offen lds")
    dm.append(f"s_cmp_eq_u32 s{sW}, 0\ns_cbranch_scc0 L_nowo8\ns_mov_b32 m0, {L_WO + 8*9216 + 8192}\ns_nop 0\nbuffer_load_dwordx4 v{vWO8+2}, {sr(WO)}, s55 offen lds\nL_nowo8:")
    def dmas(n):
        for _ in range(n):
            if dm: e.vmem(dm.pop(0), "wo")
    def pk(op, d, a, b, c=None, bc=None):
        if bc is not None:
            base = bc & ~1; h = bc & 1
            ops = f"{vr(d,2)}, {vr(a,2)}, {vr(base,2)}" + (f", {vr(c,2)}" if c is not None else "")
            z = ",0" if c is not None else ""; o = ",1" if c is not None else ""
            e.a(f"v_pk_{op}_f32 {ops} op_sel:[0,{h}{z}] op_sel_hi:[1,{h}{o}]")
        else:
            e.a(f"v_pk_{op}_f32 {vr(d,2)}, {vr(a,2)}, {vr(b,2)}" + (f", {vr(c,2)}" if c is not None else ""))
    e.a(f"s_mul_i32 s55, s{sJ}, 144\ns_mul_i32 s52, s{sW}, {2*72*1152}\ns_add_u32 s52, s52, s55\ns_mul_i32 s54, s{sW}, {2*9216}\ns_lshl_b32 s56, s{sW}, 10")
    e.drain(vm=False); e.a("s_barrier"); e.vm = []
    stamp(e, cfg, 4)
    rdst(0); rdvec(Q, 0, 0, "q"); rdvec(CQ, 0, None, "q"); rdvec(CK, 1, None, "ck")
    dmas(3)
    rdvec(bf(0), 1, 0, "k0"); rdvec(bf(1), 1, 1, "k0")
    e.need(lg="q")
    e.a(f"v_mul_f32 v{T}, {f2h(18**-0.5*LOG2E)}, v{ST+1}")
    for i in range(9): pk("fma", Q+2*i, CQ+2*i, None, Q+2*i, bc=ST)
    for i in range(9): pk("mul", Q+2*i, Q+2*i, None, bc=T)
    rdst(1); dmas(2)
    e.need(lg="ck")
    pk("mul", T+2, Q, CK); pk("mul", T+4, Q+2, CK+2)
    for i in range(2, 9): pk("fma", T+2+2*(i & 1), Q+2*i, CK+2*i, T+2+2*(i & 1))
    pk("add", T+2, T+2, T+4)
    e.a(f"v_add_f32 v{T}, v{T+2}, v{T+3}")
    for p in range(4):
        b0 = 2*(p & 1)
        if p < 3:
            rdst(2*p+2); rdvec(bf(2-b0), 1, 2*p+2, f"k{p+1}"); rdst(2*p+3); rdvec(bf(3-b0), 1, 2*p+3, f"k{p+1}")
        else:
            rdvec(bf(0), 2, 0, "v0"); rdvec(bf(1), 2, 1, "v1")
        dmas(3)
        e.need(lg=[f"k{p}", f"st{2*p+1}"])
        for i in range(9):
            for u in range(2):
                if i == 0: pk("mul", T+2+2*u, Q, bf(b0+u))
                else: pk("fma", T+2+2*u, Q+2*i, bf(b0+u)+2*i, T+2+2*u)
        for u in range(2): e.a(f"v_add_f32 v{T+2+2*u}, v{T+2+2*u}, v{T+3+2*u}")
        for u in range(2): e.a(f"v_fmac_f32 v{T+2+2*u}, v{T}, v{ST+4*(2*p+u)}")
        for u in range(2): e.a(f"v_fma_f32 v{LG+2*p+u}, v{T+2+2*u}, v{ST+4*(2*p+u)+1}, v{ST+4*(2*p+u)+2}")
    rdvec(bf(2), 2, 2, "v2"); rdvec(bf(3), 2, 3, "v3"); dmas(2)
    e.a(f"v_max3_f32 v{T}, v{LG}, v{LG+1}, v{LG+2}\nv_max3_f32 v{T+1}, v{LG+3}, v{LG+4}, v{LG+5}\nv_max3_f32 v{T}, v{T}, v{LG+6}, v{LG+7}\nv_max_f32 v{T}, v{T}, v{T+1}")
    for t in range(8): e.a(f"v_sub_f32 v{LG+t}, v{LG+t}, v{T}")
    for t in range(8): e.a(f"v_exp_f32 v{LG+t}, v{LG+t}")
    rdvec(CQ, 2, 4, "v4"); rdvec(CK, 2, 5, "v5"); dmas(2)
    pk("add", T, LG, LG+2); pk("add", T+2, LG+4, LG+6); pk("add", T, T, T+2)
    e.a(f"v_add_f32 v{T}, v{T}, v{T+1}\nv_rcp_f32 v{T}, v{T}")
    for t in range(8): e.a(f"v_mul_f32 v{LG+t}, v{LG+t}, v{ST+4*t+1}")
    e.a(f"v_mul_f32 v{T+2}, v{LG}, v{ST}\nv_mul_f32 v{T+3}, v{LG+1}, v{ST+4}")
    for t in range(2, 8): e.a(f"v_fmac_f32 v{T+2+(t&1)}, v{LG+t}, v{ST+4*t}")
    e.a(f"v_add_f32 v{T+2}, v{T+2}, v{T+3}")
    vb = [bf(0), bf(1), bf(2), bf(3), CQ, CK, Q, bf(0)]
    for t in range(8):
        if t == 1: rdvec(Q, 2, 6, "v6"); rdvec(bf(0), 2, 7, "v7"); dmas(9)
        if t == 3: rdvec(CV, 2, None, "cv")
        e.need(lg=f"v{t}")
        for i in range(9):
            if t == 0: pk("mul", O+2*i, vb[t]+2*i, None, bc=LG+t)
            else: pk("fma", O+2*i, vb[t]+2*i, None, O+2*i, bc=LG+t)
    e.need(lg="cv")
    for i in range(9): pk("fma", O+2*i, CV+2*i, None, O+2*i, bc=T+2)
    for i in range(9): pk("mul", O+2*i, O+2*i, None, bc=T)
    for i in range(9): e.a(f"v_cvt_pk_bf16_f32 v{Q+i}, v{O+2*i}, v{O+2*i+1}")
    assert not dm
    e.a(f"s_mul_i32 s57, s{sIW}, 18432\ns_add_u32 s57, s57, {WS_O}\ns_lshl_b32 s49, s{sJ}, 11\ns_add_u32 s49, s49, s57\ns_lshl_b32 s50, s{sJ}, 8\ns_add_u32 s50, s50, s57\ns_add_u32 s50, s50, 16384")
    e.vmem(f"buffer_store_dwordx4 {vr(Q)}, v{vL16}, {sr(WS)}, s49 offen sc1")
    e.vmem(f"buffer_store_dwordx4 {vr(Q+4)}, v{vL16}, {sr(WS)}, s49 offen offset:1024 sc1")
    e.vmem(f"buffer_store_dword v{Q+8}, v{vOL}, {sr(WS)}, s50 offen sc1")
    stamp(e, cfg, 5)
    signal(e, 0)

def phase2(e, cfg):
    vB, ACC, PK = 120, 192, 212
    def af(s, b, n=4, o=0):
        f = 5*s + b
        return ar(4*f + o, n) if f < 64 else vr(16 + 4*(f-64) + o, n)
    e.a("s_barrier")
    e.a(f"v_add_u32 v3, {L_WO + 9*4608}, v{vTR}")
    for s in range(18):
        for b in range(5):
            for hi in range(2):
                e.lds(f"ds_read_b64_tr_b16 {af(s, b, 2, 2*hi)}, v{vTR if s < 9 else 3} offset:{L_WO*(s < 9) + (32*(s % 9)+16*hi)*144 + 32*b}")
    for b in range(5):
        for z in range(2):
            e.a(f"v_lshlrev_b32 v{ACC+4*b+2*z}, 16, v{vRES+2*b+z}\nv_and_b32 v{ACC+4*b+2*z+1}, 0xffff0000, v{vRES+2*b+z}")
    e.a(f"v_and_b32 v10, 15, v{vLANE}\nv_lshlrev_b32 v11, 4, v10\nv_bfe_u32 v12, v{vLANE}, 4, 1\nv_lshrrev_b32 v13, 5, v{vLANE}")
    e.a("v_lshl_or_b32 v4, v12, 9, v11\nv_lshl_or_b32 v4, v13, 8, v4\nv_lshl_or_b32 v5, v12, 3, v11\nv_lshlrev_b32 v10, 2, v10\nv_lshl_or_b32 v6, v13, 6, v10")
    e.a(f"s_mul_i32 s58, s{sIW}, 19456\ns_add_u32 s58, s58, {WS_H}\ns_mul_i32 s52, s{sJ}, 2304\ns_add_u32 s52, s52, s58\ns_lshl_b32 s53, s{sJ}, 7\ns_add_u32 s53, s53, s58\ns_add_u32 s53, s53, 18432")
    e.a("v_mov_b32 v7, 0x3f803f80")
    e.drain(vm=False); e.a("s_barrier")
    stamp(e, cfg, 6)
    wait_flags(e, 0)
    stamp(e, cfg, 7)
    for s in range(18):
        e.vmem(f"buffer_load_dwordx4 {vr(vB+4*s)}, v{vL16}, {sr(WS)}, s57 offen offset:{1024*(s&3)} sc1", f"o{s}")
        if s & 3 == 3: e.a("s_add_u32 s57, s57, 4096")
    for s in range(18):
        e.need(vm=f"o{s}")
        for b in range(5): e.a(f"v_mfma_f32_16x16x32_bf16 {vr(ACC+4*b)}, {af(s, b)}, {vr(vB+4*s)}, {vr(ACC+4*b)}")
    e.a("s_nop 3")
    for b in range(5):
        e.a(f"v_cvt_pk_bf16_f32 v{PK+2*b}, v{ACC+4*b}, v{ACC+4*b+1}\nv_cvt_pk_bf16_f32 v{PK+2*b+1}, v{ACC+4*b+2}, v{ACC+4*b+3}")
    for p in range(2):
        e.a(f"v_permlane16_swap_b32 v{PK+4*p}, v{PK+4*p+2}\nv_permlane16_swap_b32 v{PK+4*p+1}, v{PK+4*p+3}")
    for p in range(2):
        e.vmem(f"buffer_store_dwordx4 {vr(PK+4*p)}, v4, {sr(WS)}, s52 offen offset:{1024*p} sc1")
    e.a("v_mov_b32 v10, 0\nv_mov_b32 v11, 0\ns_mov_b32 exec_hi, 0")
    e.vmem(f"buffer_store_dwordx2 {vr(PK+8, 2)}, v5, {sr(WS)}, s52 offen offset:2048 sc1")
    for r in (8, 9, 0, 1, 2, 3, 4, 5, 6, 7):
        e.a(f"v_dot2c_f32_bf16 v10, v{PK+r}, v7\nv_dot2c_f32_bf16 v11, v{PK+r}, v{PK+r}")
        if r == 9: e.a("s_mov_b32 exec_hi, -1")
    e.a("s_nop 2\nv_permlane32_swap_b32 v10, v11\ns_nop 0\nv_add_f32 v10, v10, v11\nv_mov_b32 v11, v10\ns_nop 1\nv_permlane16_swap_b32 v10, v11\ns_nop 0\nv_add_f32 v10, v10, v11")
    e.vmem(f"buffer_store_dword v10, v6, {sr(WS)}, s53 offen sc1")
    stamp(e, cfg, 8)
    signal(e, 1)

class P3:
    RING, AX, AY, AUGA, AUGB, CST, PKB, T = 48, 120, 152, 184, 188, 196, 202, 218
    vHA, vHR, vHW, vHS, vEW, vER, vAG, vSTA, vPS, vPSS = 234, 238, 242, 244, 245, 246, 247, 249, 250, 252
    NR = 18
    def __init__(self, e, cfg):
        self.e, self.cfg = e, cfg
        self.fc = 0; self.fl = 0; self.pk = 0; self.last = {}
    def act(self, sg, st):
        n = 2*sg + st
        return ar(4*n) if n < 64 else vr(16 + 4*(n-64))
    def load(self):
        e = self.e; f = self.fl
        if f >= 324: return 0
        e.vmem(f"buffer_load_dwordx4 {vr(self.RING + 4*(f % self.NR))}, v{vL16}, {sr(WS)}, s59 offen offset:{1024*(f & 3)}", f"w{f}")
        self.fl += 1
        if f & 3 == 3: e.a("s_add_u32 s59, s59, 4096"); return 2
        return 1
    def mfma(self, acc, a, b, first):
        self.e.a(f"v_mfma_f32_32x32x16_bf16 {vr(acc,16)}, {a}, {b}, {'0' if first else vr(acc,16)}")
        self.last[acc] = len(self.e.o)
    def settle(self, acc):
        e = self.e; d = 0
        for l in e.o[self.last[acc]:]:
            if l.endswith(":") or l.startswith("."): continue
            d += int(l.split()[1]) + 1 if l.startswith("s_nop") else 1
        if d < 12: e.a(f"s_nop {11-d}")
    def gelu(self, acc, st, wr):
        T = self.T; c0, c1, sd = self.CST + 3*st, self.CST + 3*st + 1, self.CST + 3*st + 2
        o = [('f', lambda: self.settle(acc))]
        for u in range(2):
            pb = self.PKB + 4*(self.pk & 3); self.pk += 1
            for z in range(4):
                r = acc + 8*u + 2*z; t = T + 2*(z & 1)
                for k in range(2): o.append(('v', f"v_mul_f32 v{t+k}, v{r+k}, v{r+k}", 1))
                for k in range(2): o.append(('v', f"v_fma_f32 v{t+k}, v{t+k}, v{c1}, v{c0}", 1))
                for k in range(2): o.append(('v', f"v_mul_f32 v{t+k}, v{r+k}, v{t+k}", 1))
                for k in range(2): o.append(('v', f"v_exp_f32 v{t+k}, v{t+k}", 2))
                for k in range(2): o.append(('v', f"v_fma_f32 v{t+k}, v{t+k}, v{sd}, v{sd}", 1))
                for k in range(2): o.append(('v', f"v_rcp_f32 v{t+k}, v{t+k}", 2))
                for k in range(2): o.append(('v', f"v_mul_f32 v{t+k}, v{r+k}, v{t+k}", 1))
                o.append(('v', f"v_cvt_pk_bf16_f32 v{pb+z}, v{t}, v{t+1}", 1))
            o.append(('m', (lambda pb=pb, u=u: self.e.lds(f"ds_write_b128 v{wr[0]}, {vr(pb)} offset:{wr[1] + 2048*u}", "hw"))))
        return o
    def pack(self, acc, va, so, off, zs):
        o = [('f', lambda: self.settle(acc))]
        for z in range(2):
            pb = self.PKB + 4*(self.pk & 3); self.pk += 1
            for k in range(2):
                jj = 2*z + k
                o.append(('v', f"v_cvt_pk_bf16_f32 v{pb+2*k}, v{acc+jj}, v{acc+4+jj}", 1))
                o.append(('v', f"v_cvt_pk_bf16_f32 v{pb+2*k+1}, v{acc+8+jj}, v{acc+12+jj}", 1))
            o.append(('m', (lambda pb=pb, z=z: self.e.vmem(f"buffer_store_dwordx4 {vr(pb)}, v{va}, {sr(WS)}, s{so} offen offset:{off + zs*z} sc1", "ps"))))
        return o
    def block(self, steps, acc, mem, stream, g0, g1, aug=None):
        e = self.e
        G = 2*len(steps) + (len(aug) if aug else 0)
        free = [6 - len(mem.get(g, [])) - (2 if g & 1 else 0)*0.75 for g in range(G)]
        tot = sum(it[2] for it in stream if it[0] == 'v'); tf = sum(max(free[g], 0.5) for g in range(g0, g1))
        stream = list(stream); done = 0; target = 0; pend = []
        for g in range(G):
            k, st = g >> 1, g & 1
            if k < len(steps):
                sg = steps[k]
                vm = [f"w{self.fc}", f"w{self.fc+1}"] if (st == 0 and self.fc % 2 == 0) else []
                e.need(vm=vm, lg=[f"a{sg}_{st}"])
                self.mfma(acc + 16*st, vr(self.RING + 4*(self.fc % self.NR)), self.act(sg, st), k == 0)
                if st == 1:
                    self.fc += 1; self.load()
            else:
                st = aug[g - 2*len(steps)]
                e.need(lg=["aug"])
                self.mfma(acc + 16*st, vr(self.AUGA), vr(self.AUGB + 4*st), False)
            for fn in pend: fn()
            pend = []
            for fn in mem.get(g, []): fn()
            if g0 <= g < g1:
                target += max(free[g], 0.5) * tot / tf
                while stream and (g == g1 - 1 or stream[0][0] != 'v' or done + stream[0][2]*0.5 <= target):
                    it = stream.pop(0)
                    if it[0] == 'v': e.a(it[1]); done += it[2]
                    elif it[0] == 'f': it[1]()
                    else: pend.append(it[1])
        assert not stream and not pend, (len(stream), len(pend))
    def bar(self):
        def fn():
            self.e.need(lg=["hw", "ew"]); self.e.a("s_barrier")
        return fn
    def rd_act(self, sg, st):
        return lambda: self.e.lds(f"ds_read_b128 {self.act(sg, st)}, v{self.vHA + 2*st + (sg & 1)} offset:{512*sg}", f"a{sg}_{st}")
    def rd_h(self, sg, st, bias=0):
        n = 2*sg + st
        return lambda: self.e.lds(f"ds_read_b128 {self.act(sg, st)}, v{self.vHR + (n & 3)} offset:{1024*(n & ~3) - bias}", f"a{sg}_{st}")
    def rd_aug(self, off):
        return [(lambda hi=hi: self.e.lds(f"ds_read_b64_tr_b16 {vr(self.AUGA + 2*hi, 2)}, v{self.vAG + hi} offset:{off}", "aug")) for hi in range(2)]
    def exchange(self, mem, acc, exoff):
        e = self.e
        mem.setdefault(2, []).append(lambda: self.settle(acc + 16))
        for z in range(4):
            mem.setdefault(2 + z, []).append(lambda z=z: e.lds(f"ds_write_b128 v{self.vEW}, {vr(acc+16+4*z)} offset:{exoff + 1024*z}", "ew"))
        mem.setdefault(9, []).append(self.bar())
        for z in range(4):
            mem.setdefault(10 + z//2, []).append(lambda z=z: e.lds(f"ds_read_b128 {vr(acc+16+4*z)}, v{self.vER} offset:{exoff + 1024*z}", "er"))
        o = [('f', lambda: e.need(lg=["er"]))]
        for r in range(16): o.append(('v', f"v_add_f32 v{acc+r}, v{acc+r}, v{acc+16+r}", 1))
        return o

def phase3(e, cfg):
    p = P3(e, cfg); T = p.T
    e.a(f"s_lshl_b32 s50, s{sJ}, 2\ns_add_u32 s59, s50, s{sW}\ns_mul_i32 s59, s59, {STRSZ}\ns_add_u32 s59, s59, {WS_STR}\ns_add_u32 s50, s50, 128")
    poll(e, DBG, "s50", 1, 32)
    e.a(f"s_mul_i32 s49, s{sW}, 3072\ns_add_u32 m0, s49, {L_AUG}\ns_mul_i32 s50, s{sJ}, 12288\ns_add_u32 s50, s50, s49\ns_add_u32 s50, s50, {WS_AUG}\ns_mov_b32 s60, s59")
    for k in range(3): e.vmem(f"buffer_load_dwordx4 v{vL16}, {sr(WS)}, s50 offen offset:{1024*k} lds", "augd")
    for _ in range(cfg.npre): p.load()
    nsh = 32 // cfg.nsl
    def touch(lo, hi):
        lines = (hi - lo) * 8 // nsh; o = []
        for k in range((lines + 63) // 64):
            def fn(k=k):
                e.a(f"v_add_u32 v10, {64*k}, v{vLANE}\nv_min_u32 v10, {lines-1}, v10\nv_lshlrev_b32 v10, 7, v10")
                e.a(f"s_and_b32 s49, s{sI}, {nsh-1}\ns_mul_i32 s49, s49, {lines*128}\ns_add_u32 s49, s49, s60\ns_add_u32 s49, s49, {lo*1024}")
                e.vmem(f"buffer_load_dword v255, v10, {sr(WS)}, s49 offen", "touch")
            o.append(fn)
        return o
    if cfg.touch1:
        for fn in touch(18, 162): fn()
    e.a(f"s_and_b32 s52, s{sW}, 1\ns_lshr_b32 s53, s{sW}, 1")
    e.a(f"v_bfe_u32 v10, v{vLANE}, 4, 1\nv_mul_u32_u24 v10, 19456, v10\nv_lshrrev_b32 v11, 5, v{vLANE}\nv_lshl_add_u32 v10, v11, 8, v10\nv_and_b32 v12, 15, v{vLANE}\nv_lshl_add_u32 v10, v12, 4, v10")
    for st in range(2):
        e.a(f"s_xor_b32 s49, s52, {st}\ns_mul_i32 s50, s49, {2*19456}\ns_add_u32 s50, s50, {L_HT}\ns_lshl_b32 s54, s52, 9\ns_add_u32 s55, s50, s54\ns_sub_u32 s54, s50, s54")
        e.a(f"v_add_u32 v{p.vHA+2*st}, s55, v10\nv_add_u32 v{p.vHA+2*st+1}, s54, v10")
        e.a(f"s_lshl_b32 s50, s{sW}, 12\ns_lshl_b32 s54, s49, 10\ns_add_u32 s50, s50, s54\nv_add_u32 v{p.vHW+st}, s50, v{vL16}")
        e.a(f"v_bfe_u32 v13, v{vLANE}, 3, 2\ns_lshl_b32 s49, s49, 2\nv_add_u32 v13, s49, v13\nv_mul_u32_u24 v13, 18432, v13\nv_lshl_add_u32 v13, v11, 8, v13\nv_and_b32 v14, 7, v{vLANE}\nv_lshl_add_u32 v{p.vPS+st}, v14, 4, v13")
    e.a(f"v_bfe_u32 v13, v{vLANE}, 2, 3\nv_mul_u32_u24 v13, 18432, v13\nv_lshl_add_u32 v13, v11, 7, v13\nv_and_b32 v14, 3, v{vLANE}\nv_lshl_add_u32 v{p.vPSS}, v14, 4, v13")
    e.a("s_mul_i32 s49, s52, 3")
    for n in range(4): e.a(f"s_xor_b32 s50, s49, {n}\ns_lshl_b32 s50, s50, 10\nv_add_u32 v{p.vHR+n}, s50, v{vL16}")
    e.a(f"s_lshl_b32 s49, s53, 12\ns_lshl_b32 s50, s52, 10\ns_add_u32 s49, s49, s50\nv_add_u32 v{p.vHS}, s49, v{vL16}")
    e.a(f"s_lshl_b32 s49, s{sW}, 12\ns_add_u32 s50, s49, {L_EX1}\nv_add_u32 v{p.vEW}, s50, v{vL16}\ns_xor_b32 s49, s49, 4096\ns_add_u32 s50, s49, {L_EX1}\nv_add_u32 v{p.vER}, s50, v{vL16}")
    e.a(f"v_bfe_u32 v13, v{vLANE}, 4, 1\nv_and_b32 v14, 3, v{vLANE}\nv_lshlrev_b32 v14, 3, v14\nv_lshl_or_b32 v13, v13, 5, v14\ns_lshl_b32 s49, s53, 6\ns_add_u32 s49, s49, {L_AUG}\nv_add_u32 v13, s49, v13")
    e.a(f"v_bfe_u32 v14, v{vLANE}, 2, 2\nv_add_u32 v10, 4, v14\nv_lshl_add_u32 v{p.vAG+1}, v10, 7, v13\nv_and_or_b32 v10, v14, 1, 8\nv_cmp_gt_u32 vcc, 32, v{vLANE}\ns_nop 1\nv_cndmask_b32 v10, v10, v14, vcc\nv_lshl_add_u32 v{p.vAG}, v10, 7, v13")
    e.a(f"s_mul_i32 s61, s53, {1280-64}\ns_lshl_b32 s49, s52, 6\ns_add_u32 s61, s61, s49")
    e.a(f"s_lshl_b32 s49, s52, 1\nv_lshrrev_b32 v10, 4, v{vLANE}\nv_xor_b32 v10, s49, v10\nv_mul_u32_u24 v10, 19456, v10\nv_lshl_add_u32 v10, v12, 2, v10\nv_add_u32 v{p.vSTA}, {L_HT+18432}, v10")
    e.a(f"s_mul_i32 s56, s{sIW}, 147456\ns_add_u32 s56, s56, {WS_P}\ns_lshl_b32 s49, s{sJ}, 11\ns_add_u32 s54, s56, s49\ns_lshl_b32 s49, s{sJ}, 8\ns_add_u32 s55, s56, s49\ns_add_u32 s55, s55, 16384")
    e.a(f"s_mul_i32 s57, s{sW}, 19456\ns_add_u32 s57, s57, {L_HT}")
    stamp(e, cfg, 9)
    wait_flags(e, 1)
    stamp(e, cfg, 10)
    for k in range(19):
        if k % 4 == 0: e.a(f"s_add_u32 m0, s57, {1024*k}\ns_add_u32 s50, s58, {1024*k}")
        e.vmem(f"buffer_load_dwordx4 v{vL16}, {sr(WS)}, s50 offen offset:{1024*(k&3)} sc1 lds", "h")
    while p.fl < p.NR: p.load()
    e.need(vm="h"); e.a("s_barrier")
    stamp(e, cfg, 11)
    X, Y = p.AX, p.AY
    ev = list(range(0, 36, 2)); al = list(range(36))
    E_ = [p.rd_act(s, st) for s in ev for st in range(2)]
    O_ = [(lambda jj=jj: e.lds(f"ds_read2_b32 {vr(T+2*jj, 2)}, v{p.vSTA} offset0:{32*jj} offset1:{32*jj+16}", "st")) for jj in range(8)]
    O_ += p.rd_aug(0) + [p.rd_act(s + 1, st) for s in ev for st in range(2)]
    for fn in E_[:6]: fn()
    E_ = E_[6:]; mem = {}
    for g in range(37):
        mem[g] = []
        if E_: mem[g].append(E_.pop(0))
        while O_ and len(mem[g]) < 2: mem[g].append(O_.pop(0))
    K0 = -2 * LOG2E * math.sqrt(2/math.pi); K1 = K0 * 0.044715
    C, AB = p.CST, p.AUGB
    s = [('f', lambda: e.need(lg=["st"]))]
    def v(t, c=1): s.extend(('v', l, c) for l in t.split("\n"))
    for d in (8, 4, 2):
        for r in range(d): v(f"v_add_f32 v{T+r}, v{T+r}, v{T+d+r}")
    v(f"v_mul_f32 v{T}, {f2h(-1.0/576)}, v{T}\nv_mul_f32 v{T+1}, {f2h(1.0/576)}, v{T+1}\nv_fma_f32 v{T+1}, -v{T}, v{T}, v{T+1}\nv_max_f32 v{T+1}, 0, v{T+1}\nv_add_f32 v{T+1}, {f2h(1e-5)}, v{T+1}")
    v(f"v_rsq_f32 v{T+2}, v{T+1}", 2)
    v(f"v_cvt_pk_bf16_f32 v{AB}, v{T}, v{T}\nv_mul_f32 v{C+2}, v{T+1}, v{T+2}\nv_mul_f32 v{C}, {f2h(K0)}, v{T+2}\nv_mul_f32 v{T+3}, v{T+2}, v{T+2}")
    v(f"v_mul_f32 v{C+1}, {f2h(0.044715)}, v{C}\nv_cvt_pk_bf16_f32 v{AB+4}, v{T}, v{C+2}\nv_mov_b32 v{AB+1}, v{AB}\nv_mov_b32 v{AB+5}, 0\nv_mul_f32 v{C+1}, v{C+1}, v{T+3}")
    v(f"v_mov_b32 v{C+3}, v{C}\nv_mov_b32 v{C+5}, v{C+2}\nv_mov_b32 v{C+4}, v{C+1}")
    v(f"v_permlane32_swap_b32 v{AB}, v{AB+4}\nv_permlane32_swap_b32 v{AB+1}, v{AB+5}\nv_permlane32_swap_b32 v{C}, v{C+3}\nv_permlane32_swap_b32 v{C+2}, v{C+5}\nv_permlane32_swap_b32 v{C+1}, v{C+4}")
    v(f"v_mov_b32 v{AB+2}, v{AB+1}\nv_mov_b32 v{AB+3}, v{AB+1}\nv_mov_b32 v{AB+6}, v{AB+5}\nv_mov_b32 v{AB+7}, v{AB+5}")
    v(f"v_add_u32 v{p.vAG}, s61, v{p.vAG}\nv_add_u32 v{p.vAG+1}, s61, v{p.vAG+1}")
    p.block(ev, X, mem, s, 12, 33, aug=[0])
    mem = {}
    for g, fn in enumerate(O_): mem.setdefault(g // 2, []).append(fn)
    s = p.exchange(mem, X, 0) + p.gelu(X, 0, (p.vHS, 0))
    mem[60] = p.rd_aug(1280)
    if cfg.touch2:
        for k, fn in enumerate(touch(162, 324)): mem.setdefault(62 + 2*k, []).append(fn)
    p.block(al, Y, mem, s, 14, 58, aug=[0, 1])
    for b in (2, 3, 4):
        acc, prev = (X, Y) if b % 2 == 0 else (Y, X)
        off = (2 + 4*(b-2)) * 4096
        mem = {60: p.rd_aug(1280 + 2560*(b-1))}
        if b == 4:
            mem[1] = [p.bar()]
            for n in range(40): mem.setdefault(3 + (n*66)//40, []).append(p.rd_h(n >> 1, n & 1))
        p.block(al, acc, mem, p.gelu(prev, 0, (p.vHW, off)) + p.gelu(prev + 16, 1, (p.vHW + 1, off)), 1, 72, aug=[0, 1])
    stamp(e, cfg, 12)
    mem = {1: [p.bar(), lambda: e.a("\n".join(f"v_add_u32 v{p.vHR+n}, 40960, v{p.vHR+n}" for n in range(4)))]}
    for n in range(40, 56): mem.setdefault(2 + 2*(n - 40), []).append(p.rd_h(n >> 1, n & 1, 40960))
    mem[51] = [p.bar()]
    for n in range(56, 72): mem.setdefault(52 + (n - 56)//2, []).append(p.rd_h(n >> 1, n & 1, 40960))
    off = 14 * 4096
    p.block(al, Y, mem, p.gelu(X, 0, (p.vHW, off)) + p.gelu(X + 16, 1, (p.vHW + 1, off)), 1, 49)
    def epi(acc, b): return p.pack(acc, p.vPS, 54, (b & 1)*1024 + (b >> 1)*512, 128) + p.pack(acc + 16, p.vPS + 1, 54, (b & 1)*1024 + (b >> 1)*512, 128)
    p.block(ev, X, {}, epi(Y, 0), 3, 12)
    mem = {}
    s = p.exchange(mem, X, L_EX2 - L_EX1) + p.pack(X, p.vPSS, 55, 0, 64)
    p.block(al, Y, mem, s, 14, 24)
    p.block(al, X, {}, epi(Y, 1), 3, 12)
    p.block(al, Y, {}, epi(X, 2), 3, 12)
    assert p.fc == 324
    for it in epi(Y, 3):
        if it[0] == 'v': e.a(it[1])
        else: it[1]()
    stamp(e, cfg, 13)
    signal(e, 2)

def phase4(e, cfg):
    R, HH, BB, A, AS = 48, 16, 28, 120, 136
    e.a(f"v_lshrrev_b32 v10, 3, v{vLANE}\nv_and_b32 v11, 7, v{vLANE}")
    e.a(f"v_lshlrev_b32 v12, 9, v10\nv_lshl_or_b32 v3, v11, 4, v12")
    e.a(f"v_lshlrev_b32 v4, 5, v10\nv_mul_u32_u24 v12, 1152, v11\nv_add_u32 v5, v12, v4")
    e.a(f"s_lshr_b32 s49, s{sJ}, 1\ns_lshl_b32 s50, s{sI}, 2\ns_add_u32 s49, s49, s50\ns_mul_i32 s49, s49, 19456\ns_and_b32 s50, s{sJ}, 1\ns_lshl_b32 s50, s50, 7\ns_add_u32 s49, s49, s50")
    e.a(f"s_lshl_b32 s50, s{sW}, 12\ns_add_u32 s49, s49, s50\ns_add_u32 s49, s49, {WS_H}\ns_lshl_b32 s50, s{sW}, 8")
    for k in range(2):
        e.vmem(f"buffer_load_dwordx4 {vr(HH+4*k)}, v3, {sr(WS)}, s49 offen offset:{256*k} sc1", "hb")
        e.vmem(f"buffer_load_dwordx4 {vr(BB+4*k)}, v4, {sr(B2)}, s50 offen offset:{16*k}", "hb")
    e.a(f"s_lshl_b32 s49, s{sI}, 3\ns_add_u32 s49, s49, s{sJ}\ns_mul_i32 s57, s49, {8*1152}\ns_add_u32 s57, s57, s50")
    e.a(f"v_bfe_u32 v10, v{vLANE}, 2, 2\nv_lshrrev_b32 v11, 5, v{vLANE}\nv_lshl_or_b32 v10, v10, 1, v11")
    e.a(f"v_bfe_u32 v11, v{vLANE}, 4, 1\nv_lshlrev_b32 v11, 2, v11\ns_lshl_b32 s49, s53, 3\nv_add_u32 v11, s49, v11\nv_and_b32 v12, 3, v{vLANE}")
    e.a("v_lshl_or_b32 v6, v10, 4, v11\nv_mul_u32_u24 v13, 1152, v12\nv_add_u32 v7, v13, v6\nv_lshl_or_b32 v8, v10, 8, v11\nv_lshl_or_b32 v8, v12, 4, v8")
    e.a(f"s_lshl_b32 s49, s52, 1\ns_lshr_b32 s50, s{sJ}, 2\ns_add_u32 s49, s49, s50\ns_lshl_b32 s50, s{sI}, 2\ns_add_u32 s49, s49, s50\ns_mul_i32 s49, s49, 19456")
    e.a(f"s_and_b32 s50, s{sJ}, 3\ns_lshl_b32 s50, s50, 6\ns_add_u32 s49, s49, s50\ns_add_u32 s49, s49, {WS_H + 64*256}")
    e.vmem(f"buffer_load_dword v{HH+8}, v8, {sr(WS)}, s49 offen sc1", "hb")
    e.vmem(f"buffer_load_dword v{BB+8}, v6, {sr(B2)}, 0 offen offset:1024", "hb")
    e.a(f"s_lshl_b32 s49, s{sI}, 4\ns_lshl_b32 s50, s52, 3\ns_add_u32 s49, s49, s50\ns_add_u32 s49, s49, s{sJ}\ns_mul_i32 s58, s49, {4*1152}")
    e.a(f"s_mul_i32 s49, s{sJ}, 18432\ns_add_u32 s56, s56, s49")
    wait_flags(e, 2)
    stamp(e, cfg, 14)
    order = [16, 17] + list(range(16))
    for n in order:
        if n in (16, 0, 4, 8, 12): e.a(f"s_add_u32 s50, s56, {1024*n}")
        e.vmem(f"buffer_load_dwordx4 {vr(R+4*n)}, v{vL16}, {sr(WS)}, s50 offen offset:{1024*(n&3)} sc1", f"p{n}")
    def unp(d, s): e.a(f"v_lshlrev_b32 v{d}, 16, v{s}\nv_and_b32 v{d+1}, 0xffff0000, v{s}")
    def acc(d, s, t=10): unp(t, s); e.a(f"v_pk_add_f32 {vr(d,2)}, {vr(d,2)}, {vr(t,2)}")
    for z in range(8): unp(A + 2*z, HH + z); acc(A + 2*z, BB + z, 10 + 2*(z & 1))
    unp(AS + 8, HH + 8); acc(AS + 8, BB + 8)
    e.need(vm="p17")
    for z in range(4): unp(AS + 2*z, R + 64 + z); acc(AS + 2*z, R + 68 + z, 10 + 2*(z & 1))
    e.a("s_nop 1")
    for z in range(4): e.a(f"v_permlane32_swap_b32 v{AS+z}, v{AS+4+z}")
    e.a(f"s_nop 0\nv_pk_add_f32 {vr(AS,2)}, {vr(AS,2)}, {vr(AS+4,2)}\nv_pk_add_f32 {vr(AS+2,2)}, {vr(AS+2,2)}, {vr(AS+6,2)}\ns_nop 1")
    for z in range(2): e.a(f"v_permlane16_swap_b32 v{AS+z}, v{AS+2+z}")
    e.a(f"s_nop 0\nv_pk_add_f32 {vr(AS,2)}, {vr(AS,2)}, {vr(AS+2,2)}\nv_pk_add_f32 {vr(AS,2)}, {vr(AS,2)}, {vr(AS+8,2)}\nv_cvt_pk_bf16_f32 v{AS}, v{AS}, v{AS+1}")
    for n in range(16):
        e.need(vm=f"p{n}")
        blk = n & 1
        for z in range(4): acc(A + 8*(z >> 1) + 4*blk + 2*(z & 1), R + 4*n + z, 10 + 2*(z & 1))
    for z in range(8): e.a(f"v_cvt_pk_bf16_f32 v{HH+z}, v{A+2*z}, v{A+2*z+1}")
    for k in range(2): e.vmem(f"buffer_store_dwordx4 {vr(HH+4*k)}, v5, {sr(OUT)}, s57 offen offset:{16*k}")
    e.vmem(f"buffer_store_dword v{AS}, v7, {sr(OUT)}, s58 offen offset:1024")
    stamp(e, cfg, 15)

def finish(e, cfg):
    if cfg.stamps:
        e.a(f"s_lshl_b32 s49, s2, 2\ns_add_u32 s49, s49, s{sW}\ns_lshl_b32 s49, s49, 6\ns_add_u32 s49, s49, {WS_DBG}\nv_mov_b32 v10, 0")
        for k in range(16): e.a(f"v_writelane_b32 v10, s{86+k}, {k}")
        e.a(f"v_lshlrev_b32 v11, 2, v{vLANE}\ns_mov_b64 exec, 0xffff\nbuffer_store_dword v10, v11, {sr(WS)}, s49 offen")
    e.a("s_endpgm\nL_end:")

def build(cfg):
    e = E()
    if cfg.stamps:
        for k in range(16): e.a(f"s_mov_b32 s{86+k}, 0")
    prologue(e, cfg)
    e.a(f"s_cmp_eq_u32 s{sW}, 3\ns_cbranch_scc1 L_helper")
    phase1_gemm(e, cfg)
    e.a("L_join:")
    attention(e, cfg)
    if cfg.stop > 1: phase2(e, cfg)
    if cfg.stop > 2: phase3(e, cfg)
    if cfg.stop > 3: phase4(e, cfg)
    e.a("s_branch L_fin\nL_helper:")
    e.vm = []; e.lg = []
    phase1_helper(e, cfg)
    e.a("s_branch L_join\nL_fin:")
    finish(e, cfg)
    hdr = open("sequential_preLN__sliding_local_dilated__dense_activation_gelu__prompt.s.ref").read().split("; Override launch")[0]
    return (hdr + f"; @launch grid=(256,1,1) block=(256,1,1) lds={LDS_BYTES}\n"
        + f'.amdgcn_target "amdgcn-amd-amdhsa--gfx950"\n.text\n.globl {NAME}\n.p2align 8\n.type {NAME},@function\n{NAME}:\n'
        + e.text() + f""".section .rodata,"a"
.p2align 6
.amdhsa_kernel {NAME}
  .amdhsa_next_free_vgpr 512
  .amdhsa_next_free_sgpr 102
  .amdhsa_accum_offset 256
  .amdhsa_group_segment_fixed_size 0
  .amdhsa_kernarg_size 88
  .amdhsa_user_sgpr_count 2
  .amdhsa_user_sgpr_kernarg_segment_ptr 1
  .amdhsa_system_sgpr_workgroup_id_x 1
  .amdhsa_float_denorm_mode_32 3
.end_amdhsa_kernel
""")
Cfg.npre = 8
def make(path, **kw):
    from runlib import assemble
    cfg = Cfg()
    for k, v in kw.items(): setattr(cfg, k, v)
    t = build(cfg); open(path, "w").write(t)
    assemble(t, path[:-2] + ".co", NAME, 11)
    return t
if __name__ == "__main__":
    kw = {}
    for a in sys.argv[2:]:
        k, v = a.split("="); kw[k] = int(v)
    t = make(sys.argv[1], **kw)
    print("lines", t.count("\n"), "bytes", len(t))
```

```python
import sys, math
from emit import *
NAME = "sequential_preLN__sliding_local_dilated__dense_activation_gelu__prompt_kernel"
WS_FLAG, WS_O, WS_H, WS_AUG, WS_STR, WS_P, WS_DBG = 0, 0x100000, 0x400000, 0x700000, 0x800000, 0x1400000, 0x3000000
STRSZ = 324 * 1024
OOB = 0x40000000
X, WQ, WO, W1, W2, WS, OUT, DBG, B1, B2 = 4, 8, 12, 16, 20, 24, 28, 32, 36, 40
sI, sJ, sW = 44, 45, 46
sIW = 47
sFL = 48
L_X = 0; L_RG = 92160; RGSZ = 23040; L_ST = 161280
L_WO = 0
L_H = 0; L_AUG = 73728; L_HT = 86016; L_EX1 = 57344; L_EX2 = 86016
LDS_BYTES = 163840
vLANE, vL16 = 1, 2
vAA, vAB, vA0, vB0, vAS, vOL, vTR = 3, 4, 5, 6, 7, 8, 9
vWO, vWO8, vRES = 228, 237, 240
LOG2E = 1.4426950408889634
SPIN = 1 << 18

class Cfg:
    nsl = 2; stop = 99; stamps = False; codepf = True; touch1 = True; touch2 = True; touch_wo = True

def stamp(e, cfg, k):
    if cfg.stamps:
        e.a(f"{'s_memtime' if cfg.stamps == 2 else 's_memrealtime'} s[62:63]\ns_waitcnt lgkmcnt(0)\ns_mov_b32 s{86+k}, s62"); e.lg = []

def poll(e, srd, soff, voff_expr_lanes, want, tmpv=(10, 11, 12)):
    lanes = voff_expr_lanes
    l0, l1 = e.lab("poll"), e.lab("pout")
    e.a(f"v_lshlrev_b32 v{tmpv[0]}, 2, v{vLANE}\ns_mov_b32 s49, 0\ns_mov_b64 exec, {hex((1 << lanes) - 1)}")
    e.a(f"{l0}:")
    e.a(f"buffer_load_dword v{tmpv[1]}, v{tmpv[0]}, {sr(srd)}, {soff} offen sc1")
    e.a(f"s_add_u32 s49, s49, 1\ns_waitcnt vmcnt(0)\nv_cmp_gt_u32 vcc, {want}, v{tmpv[1]}\ns_cmp_lt_u32 s49, {SPIN}")
    e.a(f"s_cbranch_scc0 {l1}\ns_cbranch_vccnz {l0}\n{l1}:\ns_mov_b64 exec, -1")
    e.vm = []

def signal(e, kind):
    e.drain(vm=True, lg=False)
    e.a(f"s_lshl_b32 s49, s{sJ}, 2\nv_mov_b32 v10, s49\nv_mov_b32 v11, 1\ns_mov_b64 exec, 1")
    e.vmem(f"buffer_store_dword v11, v10, {sr(WS)}, s{sFL} offen offset:{kind*512} sc1")
    e.a("s_mov_b64 exec, -1")

def wait_flags(e, kind):
    e.a(f"s_add_u32 s50, s{sFL}, {kind*512}")
    poll(e, WS, "s50", 8, 1)

def pcu(e, tconst=None, treg=None, off=0):
    if treg is None:
        e.a(f"v_add_u32 v10, {64*tconst}, v{vLANE}\nv_add_u32 v12, {1024*tconst - off}, v{vL16}")
    else:
        e.a(f"s_lshl_b32 s49, {treg}, 6\nv_add_u32 v10, s49, v{vLANE}\nv_lshlrev_b32 v12, 4, v10")
    e.a("v_mul_u32_u24 v11, 7282, v10\nv_lshrrev_b32 v11, 16, v11\nv_mad_i32_i24 v12, v11, s51, v12")

def prologue(e, cfg):
    e.a(f"s_cmp_ge_u32 s2, 256\ns_cbranch_scc0 L_go\ns_endpgm\nL_go:")
    if cfg.stamps: e.a(("s_memtime" if cfg.stamps == 2 else "s_memrealtime") + " s[60:61]")
    for r, off in ((X, 0), (WQ, 8), (WS, 80), (DBG, 72), (W1, 32), (W2, 48), (WO, 16), (OUT, 64), (B1, 40), (B2, 56)):
        e.a(f"s_load_dwordx2 s[{r}:{r+1}], s[0:1], {off}")
    e.a(f"v_lshrrev_b32 v10, 6, v0\nv_and_b32 v{vLANE}, 63, v0\nv_readfirstlane_b32 s{sW}, v10\nv_lshlrev_b32 v{vL16}, 4, v{vLANE}")
    if cfg.codepf:
        e.a("s_getpc_b64 s[52:53]\nL_pc:\ns_lshr_b32 s49, s2, 3\ns_lshl_b32 s49, s49, 11")
        e.a(f"v_lshrrev_b32 v11, 4, v0\nv_lshlrev_b32 v11, 7, v11\nv_add_u32 v11, s49, v11\nv_min_u32 v11, L_end-L_pc-4, v11")
        e.a("global_load_dword v255, v11, s[52:53]")
    ln = int(math.log2(cfg.nsl))
    e.a(f"s_and_b32 s{sJ}, s2, {8//cfg.nsl-1}\ns_lshl_b32 s{sJ}, s{sJ}, {ln}\ns_lshr_b32 s{sI}, s2, 3\ns_and_b32 s49, s{sI}, {cfg.nsl-1}\ns_add_u32 s{sJ}, s{sJ}, s49")
    e.a(f"s_and_b32 s49, s2, 7\ns_lshr_b32 s49, s49, {3-ln}\ns_lshl_b32 s49, s49, {5-ln}\ns_lshr_b32 s{sI}, s{sI}, {ln}\ns_add_u32 s{sI}, s{sI}, s49")
    for r, n in ((X, 2359296), (WQ, 1990656), (WS, 0x4000000), (DBG, 256), (W1, 5308416), (W2, 5308416), (WO, 663552), (OUT, 2359296), (B1, 9216), (B2, 1152)):
        e.a(f"s_mov_b32 s{r+2}, {n}\ns_mov_b32 s{r+3}, 0x20000")
    e.a(f"s_lshl_b32 s{sIW}, s{sI}, 2\ns_add_u32 s{sIW}, s{sIW}, s{sW}")
    e.a(f"s_mul_i32 s{sFL}, s{sI}, 1536\ns_lshl_b32 s49, s{sW}, 7\ns_add_u32 s{sFL}, s{sFL}, s49")
    e.a("s_movk_i32 s51, -144")
    e.a(f"v_lshrrev_b32 v10, 3, v{vLANE}\nv_and_b32 v11, 6, v10\nv_xor_b32 v11, v11, v{vLANE}\nv_and_b32 v11, 7, v11\nv_lshlrev_b32 v11, 4, v11")
    e.a("v_mul_u32_u24 v10, 1152, v10\nv_add_u32 v15, v10, v11")
    e.a(f"v_lshrrev_b32 v10, 2, v{vLANE}\nv_mul_u32_u24 v10, 144, v10\nv_and_b32 v11, 3, v{vLANE}\nv_lshl_add_u32 v{vTR}, v11, 3, v10")
    e.a(f"s_mul_i32 s54, s{sI}, {64*1152}\ns_sub_u32 s54, s54, {16*1152}")

def x_octet(e, t):
    if t is None:
        e.a("s_mov_b32 s55, 0")
    else:
        e.a(f"s_add_u32 s55, s{sJ}, {t}\ns_sub_u32 s56, s55, 9\ns_cselect_b32 s55, s55, s56\ns_add_u32 s55, s55, 1")
    e.a(f"s_lshl_b32 m0, s55, 10\ns_mul_i32 s55, s55, 9216\ns_add_i32 s55, s55, s54\ns_cmp_lt_i32 s55, 0\ns_cselect_b32 s55, {OOB}, s55")
    for L in range(9):
        e.vmem(f"buffer_load_dwordx4 v15, {sr(X)}, s55 offen offset:{128*L} lds", "x")
        if L < 8: e.a(f"s_add_u32 m0, m0, {10240-128}\ns_nop 0")

def xfrag_addr(e, d0, d1):
    e.a(f"v_bfe_u32 v10, v{vLANE}, 3, 1\nv_and_b32 v11, 7, v{vLANE}\nv_lshlrev_b32 v11, 7, v11\nv_lshl_or_b32 v11, v10, 10, v11")
    e.a(f"v_lshrrev_b32 v10, 4, v{vLANE}\nv_and_b32 v12, 6, v{vLANE}\nv_xor_b32 v10, v10, v12\nv_lshl_or_b32 v{d0}, v10, 4, v11\nv_xor_b32 v{d1}, 64, v{d0}")

def precompute(e):
    e.a("s_movk_i32 s52, 1152")
    for t in range(9):
        pcu(e, tconst=t, off=1024*(t & 3))
        e.a("v_and_b32 v13, 3, v11\nv_lshrrev_b32 v14, 4, v11\nv_lshl_or_b32 v13, v14, 2, v13\nv_bfe_u32 v14, v11, 2, 2\nv_mad_u32_u24 v13, v14, 18, v13")
        e.a(f"v_bfe_u32 v14, v11, 2, 1\nv_lshl_add_u32 v13, v14, 1, v13\nv_mad_u32_u24 v{vWO+t}, v13, s52, v12")
    for n in range(3):
        if n == 0: pcu(e, treg=f"s{sW}")
        elif n == 1: e.a(f"s_add_u32 s53, s{sW}, 4"); pcu(e, treg="s53")
        else: pcu(e, tconst=8)
        e.a("v_lshrrev_b32 v13, 5, v11\nv_bfe_u32 v14, v11, 2, 2\nv_lshl_or_b32 v13, v13, 2, v14\nv_bfe_u32 v14, v11, 4, 1\nv_lshl_or_b32 v13, v13, 1, v14")
        e.a(f"v_and_or_b32 v14, v11, 3, 16\nv_mad_u32_u24 v13, v13, 36, v14\nv_mad_u32_u24 v{vWO8+n}, v13, s52, v12")
    e.a(f"v_lshrrev_b32 v10, 4, v{vLANE}\nv_and_b32 v11, 1, v10\nv_mul_u32_u24 v12, 72, v10\nv_add_u32 v12, {L_RG}, v12")
    e.a(f"v_lshl_add_u32 v{vA0}, v11, 3, v12\nv_xor_b32 v11, 1, v11\nv_lshl_add_u32 v{vB0}, v11, 6, v12")
    e.a(f"v_and_b32 v11, 15, v{vLANE}\ns_lshl_b32 s49, s{sW}, 4\ns_add_u32 s49, s49, 2\nv_add_u32 v12, s49, v11")
    e.a(f"v_mul_u32_u24 v13, 288, v12\nv_add_u32 v{vAA}, v{vA0}, v13\nv_add_u32 v{vAB}, v{vB0}, v13")
    e.a(f"v_lshlrev_b32 v12, 4, v12\nv_add_u32 v{vAS}, {L_ST}, v12")
    e.a(f"v_lshlrev_b32 v11, 4, v11\nv_lshl_add_u32 v{vOL}, v10, 2, v11")

def residual_read(e):
    e.a(f"v_bfe_u32 v10, v{vLANE}, 3, 1\ns_lshl_b32 s49, s{sW}, 1\ns_add_u32 s49, s49, 2\nv_add_u32 v10, s49, v10")
    e.a(f"v_and_b32 v11, 7, v{vLANE}\nv_lshlrev_b32 v11, 7, v11\nv_lshl_or_b32 v250, v10, 10, v11")
    e.a(f"v_and_b32 v251, 6, v{vLANE}\nv_lshlrev_b32 v251, 4, v251")
    e.a(f"v_lshrrev_b32 v10, 4, v{vLANE}\ns_mul_i32 s49, s{sJ}, 144\nv_lshl_add_u32 v252, v10, 3, s49\ns_movk_i32 s52, 10240")
    for b in range(5):
        e.a(f"v_add_u32 v10, {32*b}, v252\nv_lshrrev_b32 v11, 7, v10\nv_and_b32 v10, 0x7f, v10\nv_xor_b32 v10, v10, v251\nv_add_u32 v10, v10, v250\nv_mad_u32_u24 v10, v11, s52, v10")
        e.lds(f"ds_read_b64 {vr(vRES+2*b, 2)}, v10", "res")

def phase1_gemm(e, cfg):
    vA, vB, vWQ, vT, vXc, vX = 16, 56, 96, 105, 106, 108
    e.a("s_movk_i32 s52, 3456")
    for t in range(9):
        pcu(e, tconst=t, off=1024*(t & 3))
        e.a("v_and_b32 v13, 35, v11\nv_and_b32 v14, 12, v11\nv_lshl_or_b32 v13, v14, 1, v13\nv_bfe_u32 v14, v11, 4, 1\nv_lshl_or_b32 v13, v14, 2, v13")
        e.a(f"v_mad_u32_u24 v{vWQ+t}, v13, s52, v12")
    e.a(f"s_add_u32 s57, s{sI}, s{sJ}\ns_mul_i32 s49, s57, 57\ns_lshr_b32 s49, s49, 9\ns_mul_i32 s49, s49, 9\ns_sub_u32 s57, s57, s49\ns_mov_b32 s64, s57")
    e.a(f"s_mul_i32 s58, s{sW}, 1152\ns_mul_i32 s49, s{sJ}, 144\ns_add_u32 s58, s58, s49")
    e.a(f"s_mul_i32 s59, s{sW}, {RGSZ}\ns_add_u32 s59, s59, {L_RG}\ns_add_u32 s53, s{sW}, 4")
    e.a("s_waitcnt lgkmcnt(0)")
    if cfg.stamps: e.a("s_mov_b32 s86, s60")
    stamp(e, cfg, 1)
    x_octet(e, f"s{sW}"); x_octet(e, "s53")
    def dma(t): return f"buffer_load_dwordx4 v{vWQ+t}, {sr(WQ)}, s65 offen offset:{1024*(t&3)} lds"
    def next_slab():
        return f"s_mul_i32 s65, s57, {64*3456}\ns_add_u32 s65, s65, s58\ns_add_u32 s57, s57, 1\ns_cmp_eq_u32 s57, 9\ns_cselect_b32 s57, 0, s57"
    for slot in range(2):
        e.a(next_slab())
        for t in range(9):
            if t % 4 == 0: e.a(f"s_add_u32 m0, s59, {slot*9216 + 1024*t}\ns_nop 0")
            e.vmem(dma(t), "w")
    for r in range(100): e.a(f"v_accvgpr_write_b32 a{r}, 0")
    xfrag_addr(e, vXc, vXc + 1)
    e.a(f"v_add_u32 v{vT}, s59, v{vTR}\nv_lshlrev_b32 v110, 1, v{vT}\nv_add_u32 v110, 9216, v110")
    e.a(f"s_mul_i32 s49, s64, 10240\nv_add_u32 v{vX}, s49, v{vXc}\nv_add_u32 v{vX+1}, s49, v{vXc+1}")
    precompute(e)
    e.a("s_waitcnt vmcnt(18)\ns_barrier")
    stamp(e, cfg, 2)
    residual_read(e)
    def reads(buf, h2):
        r = []
        for b in range(5):
            for hi in range(2):
                r.append(f"ds_read_b64_tr_b16 {vr(vA+20*buf+4*b+2*hi, 2)}, v{vT} offset:{(32*h2+16*hi)*144+32*b}")
            r.append(f"ds_read_b128 {vr(vB+20*buf+4*b)}, v{vX+h2} offset:{2048*b}")
        return r
    e.a("s_waitcnt vmcnt(13)")
    e.a("\n".join(reads(0, 0)))
    e.a(f"s_mov_b32 s60, s59\ns_mov_b32 s66, 0\ns_add_u32 s67, s59, s59\ns_add_u32 s67, s67, 9216")
    e.a(".p2align 3\nL_p1loop:")
    for half in range(2):
        gaps = [[] for _ in range(25)]
        if half == 0:
            e.a(next_slab())
            e.a(f"s_cmp_lt_u32 s66, 7\ns_cselect_b32 s65, s65, {OOB}\ns_mov_b32 m0, s60")
            for t in range(4): gaps[t].append(dma(t))
            gaps[4].append("s_add_u32 m0, s60, 4096")
            gaps[5].append("s_waitcnt vmcnt(13)")
            rd = reads(1, 1)
        else:
            for t in range(4, 8): gaps[t-4].append(dma(t))
            gaps[3].append("s_add_u32 m0, s60, 8192")
            gaps[4].append(dma(8))
            gaps[5].append("s_waitcnt vmcnt(13)")
            rd = reads(0, 0)
        for n, r in enumerate(rd): gaps[6 + n // 2].append(r)
        if half == 0:
            gaps[15] += ["s_add_u32 s64, s64, 1", "s_cmp_eq_u32 s64, 9"]
            gaps[16] += ["s_cselect_b32 s64, 0, s64", "s_mul_i32 s49, s64, 10240"]
            gaps[17] += [f"v_add_u32 v{vX}, s49, v{vXc}", f"v_add_u32 v{vX+1}, s49, v{vXc+1}"]
            gaps[18] += [f"v_sub_u32 v{vT}, v110, v{vT}"]
        else:
            gaps[15] += ["s_sub_u32 s60, s67, s60", "s_add_u32 s66, s66, 1"]
            gaps[24] += ["s_cmp_lt_u32 s66, 9"]
        e.a("s_waitcnt lgkmcnt(0)")
        n = 0
        for b in range(5):
            for mb in range(5):
                acc = ar(4*(5*b+mb))
                e.a(f"v_mfma_f32_16x16x32_bf16 {acc}, {vr(vA+20*half+4*b)}, {vr(vB+20*half+4*mb)}, {acc}")
                e.a("\n".join(gaps[n])); n += 1
    e.a("s_cbranch_scc1 L_p1loop")
    stamp(e, cfg, 3)
    e.a(f"v_and_b32 v10, 15, v{vLANE}\nv_mul_u32_u24 v10, 288, v10\nv_and_b32 v11, 48, v{vLANE}\nv_add3_u32 v10, v10, v11, s59")
    e.drain()
    for b in range(5):
        if b == 4: e.a("s_mov_b32 exec_hi, 0")
        for mb in range(5):
            e.lds(f"ds_write_b128 v10, {ar(4*(5*b+mb))} offset:{4608*mb+64*b}")
    e.a("s_mov_b32 exec_hi, -1")

def phase1_helper(e, cfg):
    vR, vO = 16, 208
    vS1, vS2, vFull, vSplit, vD0, vD1, vBi = 224, 225, 226, 227, 228, 229, 230
    vX0, vX1 = 233, 234
    e.a("v_mov_b32 v16, 0\nv_mov_b32 v17, 0\nv_mov_b32 v18, 0\nv_mov_b32 v19, 0")
    e.a(f"s_mul_i32 s57, s{sI}, 1536")
    e.a("s_waitcnt lgkmcnt(0)")
    if cfg.stamps: e.a("s_mov_b32 s86, s60")
    stamp(e, cfg, 1)
    x_octet(e, None)
    e.a(f"s_cmp_eq_u32 s{sJ}, 0\ns_cbranch_scc0 L_h_nozero")
    e.a(f"buffer_store_dwordx4 v[16:19], v{vL16}, {sr(WS)}, s57 offen sc1")
    e.a(f"buffer_store_dwordx4 v[16:19], v{vL16}, {sr(WS)}, s57 offen offset:512 sc1")
    e.a("L_h_nozero:")
    x_octet(e, 3); x_octet(e, 7); x_octet(e, 8)
    e.a(f"v_and_b32 v10, 7, v{vLANE}\nv_lshlrev_b32 v10, 4, v10\nv_lshrrev_b32 v11, 3, v{vLANE}")
    e.a(f"v_mul_u32_u24 v12, {8*9216}, v11\nv_add_u32 v{vS1}, v12, v10")
    e.a("v_and_b32 v12, 1, v11\nv_and_b32 v13, 6, v11\nv_lshl_or_b32 v13, v12, 5, v13")
    e.a(f"v_mul_u32_u24 v13, 1152, v13\nv_add_u32 v{vS2}, v13, v10")
    e.a(f"v_lshl_or_b32 v10, v12, 9, v10\nv_lshrrev_b32 v12, 1, v11\nv_lshl_or_b32 v{vFull}, v12, 10, v10")
    e.a(f"v_and_b32 v12, 1, v12\nv_mul_u32_u24 v12, {STRSZ}, v12\nv_lshrrev_b32 v13, 2, v11\nv_lshl_or_b32 v10, v13, 10, v10\nv_add_u32 v{vSplit}, v12, v10")
    e.a(f"v_and_b32 v10, 7, v{vLANE}\nv_lshl_add_u32 v10, v10, 3, v11\nv_lshlrev_b32 v235, 1, v10\nv_lshlrev_b32 v236, 1, v{vLANE}")
    e.a(f"v_and_b32 v10, 15, v{vLANE}\nv_mov_b32 v12, 0x3f803f80")
    for i in range(8):
        e.a(f"v_cmp_eq_u32 vcc, {4*(i>>1)+(i&1)}, v10\ns_nop 1\nv_cndmask_b32 v11, 0, v12, vcc")
        for z in range(4): e.a(f"v_accvgpr_write_b32 a{64+4*i+z}, v11")
    for z in range(4): e.a(f"v_accvgpr_write_b32 a{60+z}, v12")
    for r in range(40): e.a(f"v_accvgpr_write_b32 a{r}, 0")
    xfrag_addr(e, vX0, vX1)
    e.a(f"v_lshrrev_b32 v10, 2, v{vLANE}\nv_mul_u32_u24 v10, 10240, v10\nv_and_b32 v11, 3, v{vLANE}\nv_lshl_add_u32 v10, v11, 5, v10")
    e.a("s_waitcnt vmcnt(0)\ns_mov_b32 exec_hi, 0xf")
    e.a("ds_write_b128 v10, a[60:63]\nds_write_b128 v10, a[60:63] offset:16\ns_mov_b32 exec_hi, -1")
    e.a(f"s_cmp_eq_u32 s{sJ}, 0\ns_cbranch_scc0 L_h_noready")
    e.a(f"s_lshl_b32 s49, s{sI}, 2\nv_mov_b32 v11, 1\nv_mov_b32 v12, s49\ns_mov_b64 exec, 1")
    e.a(f"buffer_store_dword v11, v12, {sr(DBG)}, 0 offen sc1\ns_mov_b64 exec, -1")
    e.a("L_h_noready:")
    e.a("s_waitcnt lgkmcnt(0)\ns_barrier")
    stamp(e, cfg, 2)
    order = [0, 3, 1, 4, 2, 5]
    for n in order:
        w1 = n < 3; t = n % 3
        if w1: e.a(f"s_add_u32 s49, s{sI}, {32*t}")
        else: e.a(f"s_sub_u32 s49, {31+32*t}, s{sI}")
        e.a(f"s_mul_i32 s{64+2*n}, s49, 57\ns_lshr_b32 s{64+2*n}, s{64+2*n}, 9\ns_mul_i32 s50, s{64+2*n}, 9\ns_sub_u32 s{65+2*n}, s49, s50")
        if t == 2: e.a(f"s_cmp_lt_u32 s49, 81\ns_cbranch_scc0 L_h_ld{n}")
        e.a(f"s_lshl_b32 s50, s{64+2*n}, 7")
        if w1:
            e.a(f"s_mul_i32 s52, s{sJ}, 1152\ns_add_u32 s52, s52, s50\ns_mul_i32 s50, s{65+2*n}, {64*9216}\ns_add_u32 s50, s50, s52")
            for r in range(8):
                e.a(f"buffer_load_dwordx4 {vr(vR+32*n+4*r)}, v{vS1}, {sr(W1)}, s50 offen")
                if r < 7: e.a("s_add_u32 s50, s50, 9216")
            e.a(f"buffer_load_ushort v{vBi+n}, v235, {sr(B1)}, s52 offen")
        else:
            e.a(f"s_mul_i32 s52, s{sJ}, {576*1152}\ns_add_u32 s50, s50, s52\ns_mul_i32 s52, s{65+2*n}, {64*1152}\ns_add_u32 s50, s50, s52")
            for r in range(4):
                e.a(f"buffer_load_dwordx4 {vr(vR+32*n+4*r)}, v{vS2}, {sr(W2)}, s50 offen")
                e.a(f"buffer_load_dwordx4 {vr(vR+32*n+4*r+16)}, v{vS2}, {sr(W2)}, s50 offen offset:1152")
                if r < 3: e.a("s_add_u32 s50, s50, 9216")
        if t == 2: e.a(f"L_h_ld{n}:")
    if cfg.touch_wo:
        nsh = 32 // cfg.nsl; rows = 576 // nsh
        e.a(f"s_and_b32 s49, s{sI}, {nsh-1}\ns_mul_i32 s49, s49, {rows*1152}\ns_mul_i32 s50, s{sJ}, 144\ns_add_u32 s49, s49, s50")
        for k in range((rows + 63) // 64):
            e.a(f"v_add_u32 v10, {64*k}, v{vLANE}\nv_min_u32 v10, {rows-1}, v10\nv_mul_u32_u24 v10, 1152, v10")
            e.a(f"buffer_load_dword v254, v10, {sr(WO)}, s49 offen\nbuffer_load_dword v254, v10, {sr(WO)}, s49 offen offset:140")
    def rds(buf, h2): return [f"ds_read_b128 {ar(96+20*buf+4*mb)}, v{vX0+h2} offset:{2048*mb}" for mb in range(5)]
    e.a("\n".join(rds(0, 0)))
    e.a("s_mov_b32 s49, 0\nL_h_stat:")
    for half in range(2):
        e.a("s_waitcnt lgkmcnt(0)")
        rd = rds(1 - half, 1 - half)
        for mb in range(5):
            f = ar(96 + 20*half + 4*mb)
            e.a(f"v_mfma_f32_16x16x32_bf16 {ar(4*mb)}, {f}, {f}, {ar(4*mb)}")
            e.a(rd[mb])
            e.a(f"v_mfma_f32_16x16x32_bf16 {ar(20+4*mb)}, a[60:63], {f}, {ar(20+4*mb)}")
        if half == 0: e.a(f"v_add_u32 v{vX0}, 10240, v{vX0}\nv_add_u32 v{vX1}, 10240, v{vX1}")
    e.a("s_add_u32 s49, s49, 1\ns_cmp_lt_u32 s49, 9\ns_cbranch_scc1 L_h_stat")
    e.a(f"v_and_b32 v10, 1, v{vLANE}\nv_cmp_eq_u32 s[52:53], 1, v10\nv_and_b32 v10, 2, v{vLANE}\nv_cmp_eq_u32 s[56:57], 2, v10")
    e.a(f"v_and_b32 v10, 15, v{vLANE}\nv_lshlrev_b32 v10, 4, v10\nv_add_u32 v10, {L_ST}, v10")
    e.a(f"s_cmp_eq_u32 s{sI}, 0\ns_cselect_b32 s49, {f2h(-1e9*LOG2E)}, 0\ns_waitcnt lgkmcnt(0)")
    for mb in range(5):
        for z in range(4): e.a(f"v_accvgpr_read_b32 v{vO+z}, a{4*mb+z}")
        e.a(f"v_accvgpr_read_b32 v{vO+4}, a{20+4*mb}")
        e.a(f"v_cndmask_b32 v{vO}, v{vO}, v{vO+1}, s[52:53]\nv_cndmask_b32 v{vO+2}, v{vO+2}, v{vO+3}, s[52:53]\nv_cndmask_b32 v{vO}, v{vO}, v{vO+2}, s[56:57]")
        o = vO + 8 + 4*(mb & 1)
        e.a(f"v_mul_f32 v{o}, {f2h(-1.0/576)}, v{vO+4}\nv_mul_f32 v{vO}, {f2h(1.0/576)}, v{vO}\nv_fma_f32 v{vO}, -v{o}, v{o}, v{vO}")
        e.a(f"v_max_f32 v{vO}, 0, v{vO}\nv_add_f32 v{vO}, {f2h(1e-5)}, v{vO}\nv_rsq_f32 v{o+1}, v{vO}")
        e.a(f"v_mov_b32 v{o+2}, {'s49' if mb == 0 else 0}\nv_mov_b32 v{o+3}, 0")
        e.a("s_mov_b32 exec_lo, 0x00f0000f\ns_mov_b32 exec_hi, 0xf0000f00")
        e.a(f"ds_write_b128 v10, {vr(o)} offset:{256*mb}\ns_mov_b64 exec, -1")
    stamp(e, cfg, 3)
    e.a(f"s_mov_b32 s58, 0x05040100\ns_mov_b32 s59, 0x07060302\ns_mul_i32 s60, s{sJ}, {4*STRSZ}\ns_add_u32 s60, s60, {WS_STR}")
    e.a(f"v_and_b32 v10, 8, v{vLANE}\nv_cmp_eq_u32 s[56:57], 8, v10")
    e.a("s_waitcnt vmcnt(0)")
    for n in order:
        w1 = n < 3; t = n % 3; P, kc = 64 + 2*n, 65 + 2*n
        if t == 2: e.a(f"s_cmp_lt_u32 s{P}, 9\ns_cbranch_scc0 L_h_sh{n}")
        e.a(f"s_cmp_eq_u32 s{P}, {0 if w1 else 8}\ns_cbranch_scc0 L_h_full{n}")
        e.a(f"s_lshl_b32 s52, s{kc}, 11\ns_add_u32 s52, s52, s60")
        if not w1: e.a(f"s_add_u32 s52, s52, {198*1024}")
        e.a(f"s_add_u32 s53, s52, {2*STRSZ}\nv_mov_b32 v{vD0}, v{vSplit}\nv_mov_b32 v{vD1}, v{vSplit}\ns_branch L_h_go{n}")
        e.a(f"L_h_full{n}:\ns_lshl_b32 s52, s{kc}, 12\ns_add_u32 s52, s52, s60")
        if w1:
            e.a(f"s_sub_u32 s49, s{P}, 1\ns_and_b32 s50, s49, 1\ns_mul_i32 s50, s50, {2*STRSZ}\ns_lshr_b32 s49, s49, 1\ns_mul_i32 s49, s49, {36*1024}")
            e.a(f"s_add_u32 s52, s52, s50\ns_add_u32 s52, s52, s49\ns_add_u32 s52, s52, {18*1024}\ns_add_u32 s53, s52, {STRSZ}")
            e.a(f"v_mov_b32 v{vD0}, v{vFull}\nv_xor_b32 v{vD1}, 1024, v{vFull}")
        else:
            e.a(f"s_lshr_b32 s49, s{P}, 1\ns_mul_i32 s50, s49, {STRSZ}\ns_add_u32 s52, s52, s50\ns_and_b32 s49, s49, 1\ns_lshl_b32 s49, s49, 10")
            e.a(f"v_xor_b32 v{vD0}, s49, v{vFull}\nv_xor_b32 v{vD1}, s49, v{vFull}")
            e.a(f"s_and_b32 s49, s{P}, 1\ns_cselect_b32 s49, {90*1024}, 0\ns_cselect_b32 s50, {72*1024}, 0")
            e.a(f"s_add_u32 s53, s52, s50\ns_add_u32 s53, s53, {216*1024}\ns_add_u32 s52, s52, s49\ns_add_u32 s52, s52, {162*1024}")
        e.a(f"L_h_go{n}:")
        for i in range(8):
            o = vO + 4*(i & 3)
            for z in range(4):
                e.a(f"v_perm_b32 v{o+z}, v{vR+32*n+4*(2*z+1)+(i>>1)}, v{vR+32*n+4*(2*z)+(i>>1)}, s{58+(i&1)}")
            e.a(f"buffer_store_dwordx4 {vr(o)}, v{vD0+(i>>2)}, {sr(WS)}, s{52+(i>>2)} offen offset:{128*(i&3)} sc1")
            if w1:
                e.a(f"s_nop 0\nv_mfma_f32_16x16x32_bf16 v[12:15], {ar(64+4*i)}, {vr(o)}, {'0' if i == 0 else 'v[12:15]'}")
        if w1:
            e.a(f"s_mul_i32 s49, s{P}, 10\ns_add_u32 s50, s49, s{kc}\ns_lshl_b32 s50, s50, 7\ns_mul_i32 s52, s{sJ}, 12288\ns_add_u32 s52, s52, {WS_AUG}\ns_add_u32 s50, s50, s52\ns_nop 2")
            e.a("v_add_f32_dpp v10, v12, v12 row_ror:8 row_mask:0xf bank_mask:0xf\nv_add_f32_dpp v11, v13, v13 row_ror:8 row_mask:0xf bank_mask:0xf")
            e.a("v_cndmask_b32 v10, v10, v11, s[56:57]\nv_cvt_pk_bf16_f32 v10, v10, v10")
            e.a(f"buffer_store_short v10, v236, {sr(WS)}, s50 offen sc1")
            e.a(f"s_cmp_eq_u32 s{kc}, 0\ns_cbranch_scc0 L_h_nb{n}")
            e.a(f"buffer_store_short v{vBi+n}, v236, {sr(WS)}, s50 offen offset:{9*128} sc1\nL_h_nb{n}:")
        if t == 2: e.a(f"L_h_sh{n}:")
    precompute(e)
    residual_read(e)
    e.a(f"s_lshl_b32 s49, s{sJ}, 2\ns_add_u32 s49, s49, 128\nv_mov_b32 v11, 1\nv_mov_b32 v12, s49\ns_waitcnt vmcnt(0)\ns_mov_b64 exec, 1")
    e.a(f"buffer_atomic_add v11, v12, {sr(DBG)}, 0 offen sc1\ns_mov_b64 exec, -1")
    e.a(f"s_lshl_b32 s50, s{sI}, 2")
    poll(e, DBG, "s50", 1, 1)

def attention(e, cfg):
    Q, CQ, CK, CV, ST, BF, LG, O, T = 16, 34, 52, 70, 88, 120, 192, 200, 218
    def bf(n): return BF + 18*n
    def rdvec(dst, c, t, tag):
        a, b, off = (vA0, vB0, c*RGSZ) if t is None else (vAA, vAB, c*RGSZ + (7-t)*576)
        for i in range(4): e.lds(f"ds_read_b128 {vr(dst+4*i)}, v{a} offset:{off+16*i}", tag)
        e.lds(f"ds_read_b64 {vr(dst+16, 2)}, v{b} offset:{off}", tag)
    def rdst(t): e.lds(f"ds_read_b128 {vr(ST+4*t)}, v{vAS} offset:{(7-t)*32}", f"st{t}")
    dm = []
    for sl in range(2):
        for t in range(9):
            pre = ""
            if t == 0: pre += f"s_add_u32 s53, s52, {sl*72*1152}\n"
            if t % 4 == 0: pre += f"s_add_u32 m0, s54, {sl*9216 + 1024*t}\ns_nop 0\n"
            dm.append(pre + f"buffer_load_dwordx4 v{vWO+t}, {sr(WO)}, s53 offen offset:{1024*(t&3)} lds")
    for n in range(2):
        dm.append(f"s_add_u32 m0, s56, {L_WO + 8*9216 + 4096*n}\ns_nop 0\nbuffer_load_dwordx4 v{vWO8+n}, {sr(WO)}, s55 offen lds")
    dm.append(f"s_cmp_eq_u32 s{sW}, 0\ns_cbranch_scc0 L_nowo8\ns_mov_b32 m0, {L_WO + 8*9216 + 8192}\ns_nop 0\nbuffer_load_dwordx4 v{vWO8+2}, {sr(WO)}, s55 offen lds\nL_nowo8:")
    def dmas(n):
        for _ in range(n):
            if dm: e.vmem(dm.pop(0), "wo")
    def pk(op, d, a, b, c=None, bc=None):
        if bc is not None:
            base = bc & ~1; h = bc & 1
            ops = f"{vr(d,2)}, {vr(a,2)}, {vr(base,2)}" + (f", {vr(c,2)}" if c is not None else "")
            z = ",0" if c is not None else ""; o = ",1" if c is not None else ""
            e.a(f"v_pk_{op}_f32 {ops} op_sel:[0,{h}{z}] op_sel_hi:[1,{h}{o}]")
        else:
            e.a(f"v_pk_{op}_f32 {vr(d,2)}, {vr(a,2)}, {vr(b,2)}" + (f", {vr(c,2)}" if c is not None else ""))
    e.a(f"s_mul_i32 s55, s{sJ}, 144\ns_mul_i32 s52, s{sW}, {2*72*1152}\ns_add_u32 s52, s52, s55\ns_mul_i32 s54, s{sW}, {2*9216}\ns_lshl_b32 s56, s{sW}, 10")
    e.drain(vm=False); e.a("s_barrier"); e.vm = []
    stamp(e, cfg, 4)
    rdst(0); rdvec(Q, 0, 0, "q"); rdvec(CQ, 0, None, "q"); rdvec(CK, 1, None, "ck")
    dmas(3)
    rdvec(bf(0), 1, 0, "k0"); rdvec(bf(1), 1, 1, "k0")
    e.need(lg="q")
    e.a(f"v_mul_f32 v{T}, {f2h(18**-0.5*LOG2E)}, v{ST+1}")
    for i in range(9): pk("fma", Q+2*i, CQ+2*i, None, Q+2*i, bc=ST)
    for i in range(9): pk("mul", Q+2*i, Q+2*i, None, bc=T)
    rdst(1); dmas(2)
    e.need(lg="ck")
    pk("mul", T+2, Q, CK); pk("mul", T+4, Q+2, CK+2)
    for i in range(2, 9): pk("fma", T+2+2*(i & 1), Q+2*i, CK+2*i, T+2+2*(i & 1))
    pk("add", T+2, T+2, T+4)
    e.a(f"v_add_f32 v{T}, v{T+2}, v{T+3}")
    for p in range(4):
        b0 = 2*(p & 1)
        if p < 3:
            rdst(2*p+2); rdvec(bf(2-b0), 1, 2*p+2, f"k{p+1}"); rdst(2*p+3); rdvec(bf(3-b0), 1, 2*p+3, f"k{p+1}")
        else:
            rdvec(bf(0), 2, 0, "v0"); rdvec(bf(1), 2, 1, "v1")
        dmas(3)
        e.need(lg=[f"k{p}", f"st{2*p+1}"])
        for i in range(9):
            for u in range(2):
                if i == 0: pk("mul", T+2+2*u, Q, bf(b0+u))
                else: pk("fma", T+2+2*u, Q+2*i, bf(b0+u)+2*i, T+2+2*u)
        for u in range(2): e.a(f"v_add_f32 v{T+2+2*u}, v{T+2+2*u}, v{T+3+2*u}")
        for u in range(2): e.a(f"v_fmac_f32 v{T+2+2*u}, v{T}, v{ST+4*(2*p+u)}")
        for u in range(2): e.a(f"v_fma_f32 v{LG+2*p+u}, v{T+2+2*u}, v{ST+4*(2*p+u)+1}, v{ST+4*(2*p+u)+2}")
    rdvec(bf(2), 2, 2, "v2"); rdvec(bf(3), 2, 3, "v3"); dmas(2)
    e.a(f"v_max3_f32 v{T}, v{LG}, v{LG+1}, v{LG+2}\nv_max3_f32 v{T+1}, v{LG+3}, v{LG+4}, v{LG+5}\nv_max3_f32 v{T}, v{T}, v{LG+6}, v{LG+7}\nv_max_f32 v{T}, v{T}, v{T+1}")
    for t in range(8): e.a(f"v_sub_f32 v{LG+t}, v{LG+t}, v{T}")
    for t in range(8): e.a(f"v_exp_f32 v{LG+t}, v{LG+t}")
    rdvec(CQ, 2, 4, "v4"); rdvec(CK, 2, 5, "v5"); dmas(2)
    pk("add", T, LG, LG+2); pk("add", T+2, LG+4, LG+6); pk("add", T, T, T+2)
    e.a(f"v_add_f32 v{T}, v{T}, v{T+1}\nv_rcp_f32 v{T}, v{T}")
    for t in range(8): e.a(f"v_mul_f32 v{LG+t}, v{LG+t}, v{ST+4*t+1}")
    e.a(f"v_mul_f32 v{T+2}, v{LG}, v{ST}\nv_mul_f32 v{T+3}, v{LG+1}, v{ST+4}")
    for t in range(2, 8): e.a(f"v_fmac_f32 v{T+2+(t&1)}, v{LG+t}, v{ST+4*t}")
    e.a(f"v_add_f32 v{T+2}, v{T+2}, v{T+3}")
    vb = [bf(0), bf(1), bf(2), bf(3), CQ, CK, Q, bf(0)]
    for t in range(8):
        if t == 1: rdvec(Q, 2, 6, "v6"); rdvec(bf(0), 2, 7, "v7"); dmas(9)
        if t == 3: rdvec(CV, 2, None, "cv")
        e.need(lg=f"v{t}")
        for i in range(9):
            if t == 0: pk("mul", O+2*i, vb[t]+2*i, None, bc=LG+t)
            else: pk("fma", O+2*i, vb[t]+2*i, None, O+2*i, bc=LG+t)
    e.need(lg="cv")
    for i in range(9): pk("fma", O+2*i, CV+2*i, None, O+2*i, bc=T+2)
    for i in range(9): pk("mul", O+2*i, O+2*i, None, bc=T)
    for i in range(9): e.a(f"v_cvt_pk_bf16_f32 v{Q+i}, v{O+2*i}, v{O+2*i+1}")
    assert not dm
    e.a(f"s_mul_i32 s57, s{sIW}, 18432\ns_add_u32 s57, s57, {WS_O}\ns_lshl_b32 s49, s{sJ}, 11\ns_add_u32 s49, s49, s57\ns_lshl_b32 s50, s{sJ}, 8\ns_add_u32 s50, s50, s57\ns_add_u32 s50, s50, 16384")
    e.vmem(f"buffer_store_dwordx4 {vr(Q)}, v{vL16}, {sr(WS)}, s49 offen sc1")
    e.vmem(f"buffer_store_dwordx4 {vr(Q+4)}, v{vL16}, {sr(WS)}, s49 offen offset:1024 sc1")
    e.vmem(f"buffer_store_dword v{Q+8}, v{vOL}, {sr(WS)}, s50 offen sc1")
    stamp(e, cfg, 5)
    signal(e, 0)

def phase2(e, cfg):
    vB, ACC, PK = 120, 192, 212
    def af(s, b, n=4, o=0):
        f = 5*s + b
        return ar(4*f + o, n) if f < 64 else vr(16 + 4*(f-64) + o, n)
    e.a("s_barrier")
    e.a(f"v_add_u32 v3, {L_WO + 9*4608}, v{vTR}")
    for s in range(18):
        for b in range(5):
            for hi in range(2):
                e.lds(f"ds_read_b64_tr_b16 {af(s, b, 2, 2*hi)}, v{vTR if s < 9 else 3} offset:{L_WO*(s < 9) + (32*(s % 9)+16*hi)*144 + 32*b}")
    for b in range(5):
        for z in range(2):
            e.a(f"v_lshlrev_b32 v{ACC+4*b+2*z}, 16, v{vRES+2*b+z}\nv_and_b32 v{ACC+4*b+2*z+1}, 0xffff0000, v{vRES+2*b+z}")
    e.a(f"v_and_b32 v10, 15, v{vLANE}\nv_lshlrev_b32 v11, 4, v10\nv_bfe_u32 v12, v{vLANE}, 4, 1\nv_lshrrev_b32 v13, 5, v{vLANE}")
    e.a("v_lshl_or_b32 v4, v12, 9, v11\nv_lshl_or_b32 v4, v13, 8, v4\nv_lshl_or_b32 v5, v12, 3, v11\nv_lshlrev_b32 v10, 2, v10\nv_lshl_or_b32 v6, v13, 6, v10")
    e.a(f"s_mul_i32 s58, s{sIW}, 19456\ns_add_u32 s58, s58, {WS_H}\ns_mul_i32 s52, s{sJ}, 2304\ns_add_u32 s52, s52, s58\ns_lshl_b32 s53, s{sJ}, 7\ns_add_u32 s53, s53, s58\ns_add_u32 s53, s53, 18432")
    e.a("v_mov_b32 v7, 0x3f803f80")
    e.drain(vm=False); e.a("s_barrier")
    stamp(e, cfg, 6)
    wait_flags(e, 0)
    stamp(e, cfg, 7)
    for s in range(18):
        e.vmem(f"buffer_load_dwordx4 {vr(vB+4*s)}, v{vL16}, {sr(WS)}, s57 offen offset:{1024*(s&3)} sc1", f"o{s}")
        if s & 3 == 3: e.a("s_add_u32 s57, s57, 4096")
    for s in range(18):
        e.need(vm=f"o{s}")
        for b in range(5): e.a(f"v_mfma_f32_16x16x32_bf16 {vr(ACC+4*b)}, {af(s, b)}, {vr(vB+4*s)}, {vr(ACC+4*b)}")
    e.a("s_nop 3")
    for b in range(5):
        e.a(f"v_cvt_pk_bf16_f32 v{PK+2*b}, v{ACC+4*b}, v{ACC+4*b+1}\nv_cvt_pk_bf16_f32 v{PK+2*b+1}, v{ACC+4*b+2}, v{ACC+4*b+3}")
    for p in range(2):
        e.a(f"v_permlane16_swap_b32 v{PK+4*p}, v{PK+4*p+2}\nv_permlane16_swap_b32 v{PK+4*p+1}, v{PK+4*p+3}")
    for p in range(2):
        e.vmem(f"buffer_store_dwordx4 {vr(PK+4*p)}, v4, {sr(WS)}, s52 offen offset:{1024*p} sc1")
    e.a("v_mov_b32 v10, 0\nv_mov_b32 v11, 0\ns_mov_b32 exec_hi, 0")
    e.vmem(f"buffer_store_dwordx2 {vr(PK+8, 2)}, v5, {sr(WS)}, s52 offen offset:2048 sc1")
    for r in (8, 9, 0, 1, 2, 3, 4, 5, 6, 7):
        e.a(f"v_dot2c_f32_bf16 v10, v{PK+r}, v7\nv_dot2c_f32_bf16 v11, v{PK+r}, v{PK+r}")
        if r == 9: e.a("s_mov_b32 exec_hi, -1")
    e.a("s_nop 2\nv_permlane32_swap_b32 v10, v11\ns_nop 0\nv_add_f32 v10, v10, v11\nv_mov_b32 v11, v10\ns_nop 1\nv_permlane16_swap_b32 v10, v11\ns_nop 0\nv_add_f32 v10, v10, v11")
    e.vmem(f"buffer_store_dword v10, v6, {sr(WS)}, s53 offen sc1")
    stamp(e, cfg, 8)
    signal(e, 1)

class P3:
    RING, AX, AY, AUGA, AUGB, CST, PKB, T = 48, 120, 152, 184, 188, 196, 202, 218
    vHA, vHR, vHW, vHS, vEW, vER, vAG, vSTA, vPS, vPSS = 234, 238, 242, 244, 245, 246, 247, 249, 250, 252
    NR = 18
    def __init__(self, e, cfg):
        self.e, self.cfg = e, cfg
        self.fc = 0; self.fl = 0; self.pk = 0; self.last = {}
    def act(self, sg, st):
        n = 2*sg + st
        return ar(4*n) if n < 64 else vr(16 + 4*(n-64))
    def load(self):
        e = self.e; f = self.fl
        if f >= 324: return 0
        e.vmem(f"buffer_load_dwordx4 {vr(self.RING + 4*(f % self.NR))}, v{vL16}, {sr(WS)}, s59 offen offset:{1024*(f & 3)}", f"w{f}")
        self.fl += 1
        if f & 3 == 3: e.a("s_add_u32 s59, s59, 4096"); return 2
        return 1
    def mfma(self, acc, a, b, first):
        self.e.a(f"v_mfma_f32_32x32x16_bf16 {vr(acc,16)}, {a}, {b}, {'0' if first else vr(acc,16)}")
        self.last[acc] = len(self.e.o)
    def settle(self, acc):
        e = self.e; d = 0
        for l in e.o[self.last[acc]:]:
            if l.endswith(":") or l.startswith("."): continue
            d += int(l.split()[1]) + 1 if l.startswith("s_nop") else 1
        if d < 12: e.a(f"s_nop {11-d}")
    def gelu(self, acc, st, wr):
        T = self.T; c0, c1, sd = self.CST + 3*st, self.CST + 3*st + 1, self.CST + 3*st + 2
        o = [('f', lambda: self.settle(acc))]
        for u in range(2):
            pb = self.PKB + 4*(self.pk & 3); self.pk += 1
            for z in range(4):
                r = acc + 8*u + 2*z; t = T + 2*(z & 1)
                for k in range(2): o.append(('v', f"v_mul_f32 v{t+k}, v{r+k}, v{r+k}", 1))
                for k in range(2): o.append(('v', f"v_fma_f32 v{t+k}, v{t+k}, v{c1}, v{c0}", 1))
                for k in range(2): o.append(('v', f"v_mul_f32 v{t+k}, v{r+k}, v{t+k}", 1))
                for k in range(2): o.append(('v', f"v_exp_f32 v{t+k}, v{t+k}", 2))
                for k in range(2): o.append(('v', f"v_fma_f32 v{t+k}, v{t+k}, v{sd}, v{sd}", 1))
                for k in range(2): o.append(('v', f"v_rcp_f32 v{t+k}, v{t+k}", 2))
                for k in range(2): o.append(('v', f"v_mul_f32 v{t+k}, v{r+k}, v{t+k}", 1))
                o.append(('v', f"v_cvt_pk_bf16_f32 v{pb+z}, v{t}, v{t+1}", 1))
            o.append(('m', (lambda pb=pb, u=u: self.e.lds(f"ds_write_b128 v{wr[0]}, {vr(pb)} offset:{wr[1] + 2048*u}", "hw"))))
        return o
    def pack(self, acc, va, so, off, zs):
        o = [('f', lambda: self.settle(acc))]
        for z in range(2):
            pb = self.PKB + 4*(self.pk & 3); self.pk += 1
            for k in range(2):
                jj = 2*z + k
                o.append(('v', f"v_cvt_pk_bf16_f32 v{pb+2*k}, v{acc+jj}, v{acc+4+jj}", 1))
                o.append(('v', f"v_cvt_pk_bf16_f32 v{pb+2*k+1}, v{acc+8+jj}, v{acc+12+jj}", 1))
            o.append(('m', (lambda pb=pb, z=z: self.e.vmem(f"buffer_store_dwordx4 {vr(pb)}, v{va}, {sr(WS)}, s{so} offen offset:{off + zs*z} sc1", "ps"))))
        return o
    def block(self, steps, acc, mem, stream, g0, g1, aug=None):
        e = self.e
        G = 2*len(steps) + (len(aug) if aug else 0)
        free = [6 - len(mem.get(g, [])) - (2 if g & 1 else 0)*0.75 for g in range(G)]
        tot = sum(it[2] for it in stream if it[0] == 'v'); tf = sum(max(free[g], 0.5) for g in range(g0, g1))
        stream = list(stream); done = 0; target = 0; pend = []
        for g in range(G):
            k, st = g >> 1, g & 1
            if k < len(steps):
                sg = steps[k]
                vm = [f"w{self.fc}", f"w{self.fc+1}"] if (st == 0 and self.fc % 2 == 0) else []
                e.need(vm=vm, lg=[f"a{sg}_{st}"])
                self.mfma(acc + 16*st, vr(self.RING + 4*(self.fc % self.NR)), self.act(sg, st), k == 0)
                if st == 1:
                    self.fc += 1; self.load()
            else:
                st = aug[g - 2*len(steps)]
                e.need(lg=["aug"])
                self.mfma(acc + 16*st, vr(self.AUGA), vr(self.AUGB + 4*st), False)
            for fn in pend: fn()
            pend = []
            for fn in mem.get(g, []): fn()
            if g0 <= g < g1:
                target += max(free[g], 0.5) * tot / tf
                while stream and (g == g1 - 1 or stream[0][0] != 'v' or done + stream[0][2]*0.5 <= target):
                    it = stream.pop(0)
                    if it[0] == 'v': e.a(it[1]); done += it[2]
                    elif it[0] == 'f': it[1]()
                    else: pend.append(it[1])
        assert not stream and not pend, (len(stream), len(pend))
    def bar(self):
        def fn():
            self.e.need(lg=["hw", "ew"]); self.e.a("s_barrier")
        return fn
    def rd_act(self, sg, st):
        return lambda: self.e.lds(f"ds_read_b128 {self.act(sg, st)}, v{self.vHA + 2*st + (sg & 1)} offset:{512*sg}", f"a{sg}_{st}")
    def rd_h(self, sg, st, bias=0):
        n = 2*sg + st
        return lambda: self.e.lds(f"ds_read_b128 {self.act(sg, st)}, v{self.vHR + (n & 3)} offset:{1024*(n & ~3) - bias}", f"a{sg}_{st}")
    def rd_aug(self, off):
        return [(lambda hi=hi: self.e.lds(f"ds_read_b64_tr_b16 {vr(self.AUGA + 2*hi, 2)}, v{self.vAG + hi} offset:{off}", "aug")) for hi in range(2)]
    def exchange(self, mem, acc, exoff):
        e = self.e
        mem.setdefault(2, []).append(lambda: self.settle(acc + 16))
        for z in range(4):
            mem.setdefault(2 + z, []).append(lambda z=z: e.lds(f"ds_write_b128 v{self.vEW}, {vr(acc+16+4*z)} offset:{exoff + 1024*z}", "ew"))
        mem.setdefault(9, []).append(self.bar())
        for z in range(4):
            mem.setdefault(10 + z//2, []).append(lambda z=z: e.lds(f"ds_read_b128 {vr(acc+16+4*z)}, v{self.vER} offset:{exoff + 1024*z}", "er"))
        o = [('f', lambda: e.need(lg=["er"]))]
        for r in range(16): o.append(('v', f"v_add_f32 v{acc+r}, v{acc+r}, v{acc+16+r}", 1))
        return o

def phase3(e, cfg):
    p = P3(e, cfg); T = p.T
    e.a(f"s_lshl_b32 s50, s{sJ}, 2\ns_add_u32 s59, s50, s{sW}\ns_mul_i32 s59, s59, {STRSZ}\ns_add_u32 s59, s59, {WS_STR}\ns_add_u32 s50, s50, 128")
    poll(e, DBG, "s50", 1, 32)
    e.a(f"s_mul_i32 s49, s{sW}, 3072\ns_add_u32 m0, s49, {L_AUG}\ns_mul_i32 s50, s{sJ}, 12288\ns_add_u32 s50, s50, s49\ns_add_u32 s50, s50, {WS_AUG}\ns_mov_b32 s60, s59")
    for k in range(3): e.vmem(f"buffer_load_dwordx4 v{vL16}, {sr(WS)}, s50 offen offset:{1024*k} lds", "augd")
    for _ in range(cfg.npre): p.load()
    nsh = 32 // cfg.nsl
    def touch(lo, hi):
        lines = (hi - lo) * 8 // nsh; o = []
        for k in range((lines + 63) // 64):
            def fn(k=k):
                e.a(f"v_add_u32 v10, {64*k}, v{vLANE}\nv_min_u32 v10, {lines-1}, v10\nv_lshlrev_b32 v10, 7, v10")
                e.a(f"s_and_b32 s49, s{sI}, {nsh-1}\ns_mul_i32 s49, s49, {lines*128}\ns_add_u32 s49, s49, s60\ns_add_u32 s49, s49, {lo*1024}")
                e.vmem(f"buffer_load_dword v255, v10, {sr(WS)}, s49 offen", "touch")
            o.append(fn)
        return o
    if cfg.touch1:
        for fn in touch(18, 162): fn()
    e.a(f"s_and_b32 s52, s{sW}, 1\ns_lshr_b32 s53, s{sW}, 1")
    e.a(f"v_bfe_u32 v10, v{vLANE}, 4, 1\nv_mul_u32_u24 v10, 19456, v10\nv_lshrrev_b32 v11, 5, v{vLANE}\nv_lshl_add_u32 v10, v11, 8, v10\nv_and_b32 v12, 15, v{vLANE}\nv_lshl_add_u32 v10, v12, 4, v10")
    for st in range(2):
        e.a(f"s_xor_b32 s49, s52, {st}\ns_mul_i32 s50, s49, {2*19456}\ns_add_u32 s50, s50, {L_HT}\ns_lshl_b32 s54, s52, 9\ns_add_u32 s55, s50, s54\ns_sub_u32 s54, s50, s54")
        e.a(f"v_add_u32 v{p.vHA+2*st}, s55, v10\nv_add_u32 v{p.vHA+2*st+1}, s54, v10")
        e.a(f"s_lshl_b32 s50, s{sW}, 12\ns_lshl_b32 s54, s49, 10\ns_add_u32 s50, s50, s54\nv_add_u32 v{p.vHW+st}, s50, v{vL16}")
        e.a(f"v_bfe_u32 v13, v{vLANE}, 3, 2\ns_lshl_b32 s49, s49, 2\nv_add_u32 v13, s49, v13\nv_mul_u32_u24 v13, 18432, v13\nv_lshl_add_u32 v13, v11, 8, v13\nv_and_b32 v14, 7, v{vLANE}\nv_lshl_add_u32 v{p.vPS+st}, v14, 4, v13")
    e.a(f"v_bfe_u32 v13, v{vLANE}, 2, 3\nv_mul_u32_u24 v13, 18432, v13\nv_lshl_add_u32 v13, v11, 7, v13\nv_and_b32 v14, 3, v{vLANE}\nv_lshl_add_u32 v{p.vPSS}, v14, 4, v13")
    e.a("s_mul_i32 s49, s52, 3")
    for n in range(4): e.a(f"s_xor_b32 s50, s49, {n}\ns_lshl_b32 s50, s50, 10\nv_add_u32 v{p.vHR+n}, s50, v{vL16}")
    e.a(f"s_lshl_b32 s49, s53, 12\ns_lshl_b32 s50, s52, 10\ns_add_u32 s49, s49, s50\nv_add_u32 v{p.vHS}, s49, v{vL16}")
    e.a(f"s_lshl_b32 s49, s{sW}, 12\ns_add_u32 s50, s49, {L_EX1}\nv_add_u32 v{p.vEW}, s50, v{vL16}\ns_xor_b32 s49, s49, 4096\ns_add_u32 s50, s49, {L_EX1}\nv_add_u32 v{p.vER}, s50, v{vL16}")
    e.a(f"v_bfe_u32 v13, v{vLANE}, 4, 1\nv_and_b32 v14, 3, v{vLANE}\nv_lshlrev_b32 v14, 3, v14\nv_lshl_or_b32 v13, v13, 5, v14\ns_lshl_b32 s49, s53, 6\ns_add_u32 s49, s49, {L_AUG}\nv_add_u32 v13, s49, v13")
    e.a(f"v_bfe_u32 v14, v{vLANE}, 2, 2\nv_add_u32 v10, 4, v14\nv_lshl_add_u32 v{p.vAG+1}, v10, 7, v13\nv_and_or_b32 v10, v14, 1, 8\nv_cmp_gt_u32 vcc, 32, v{vLANE}\ns_nop 1\nv_cndmask_b32 v10, v10, v14, vcc\nv_lshl_add_u32 v{p.vAG}, v10, 7, v13")
    e.a(f"s_mul_i32 s61, s53, {1280-64}\ns_lshl_b32 s49, s52, 6\ns_add_u32 s61, s61, s49")
    e.a(f"s_lshl_b32 s49, s52, 1\nv_lshrrev_b32 v10, 4, v{vLANE}\nv_xor_b32 v10, s49, v10\nv_mul_u32_u24 v10, 19456, v10\nv_lshl_add_u32 v10, v12, 2, v10\nv_add_u32 v{p.vSTA}, {L_HT+18432}, v10")
    e.a(f"s_mul_i32 s56, s{sIW}, 147456\ns_add_u32 s56, s56, {WS_P}\ns_lshl_b32 s49, s{sJ}, 11\ns_add_u32 s54, s56, s49\ns_lshl_b32 s49, s{sJ}, 8\ns_add_u32 s55, s56, s49\ns_add_u32 s55, s55, 16384")
    e.a(f"s_mul_i32 s57, s{sW}, 19456\ns_add_u32 s57, s57, {L_HT}")
    stamp(e, cfg, 9)
    wait_flags(e, 1)
    stamp(e, cfg, 10)
    for k in range(19):
        if k % 4 == 0: e.a(f"s_add_u32 m0, s57, {1024*k}\ns_add_u32 s50, s58, {1024*k}")
        e.vmem(f"buffer_load_dwordx4 v{vL16}, {sr(WS)}, s50 offen offset:{1024*(k&3)} sc1 lds", "h")
    while p.fl < p.NR: p.load()
    e.need(vm="h"); e.a("s_barrier")
    stamp(e, cfg, 11)
    X, Y = p.AX, p.AY
    ev = list(range(0, 36, 2)); al = list(range(36))
    E_ = [p.rd_act(s, st) for s in ev for st in range(2)]
    O_ = [(lambda jj=jj: e.lds(f"ds_read2_b32 {vr(T+2*jj, 2)}, v{p.vSTA} offset0:{32*jj} offset1:{32*jj+16}", "st")) for jj in range(8)]
    O_ += p.rd_aug(0) + [p.rd_act(s + 1, st) for s in ev for st in range(2)]
    for fn in E_[:6]: fn()
    E_ = E_[6:]; mem = {}
    for g in range(37):
        mem[g] = []
        if E_: mem[g].append(E_.pop(0))
        while O_ and len(mem[g]) < 2: mem[g].append(O_.pop(0))
    K0 = -2 * LOG2E * math.sqrt(2/math.pi); K1 = K0 * 0.044715
    C, AB = p.CST, p.AUGB
    s = [('f', lambda: e.need(lg=["st"]))]
    def v(t, c=1): s.extend(('v', l, c) for l in t.split("\n"))
    for d in (8, 4, 2):
        for r in range(d): v(f"v_add_f32 v{T+r}, v{T+r}, v{T+d+r}")
    v(f"v_mul_f32 v{T}, {f2h(-1.0/576)}, v{T}\nv_mul_f32 v{T+1}, {f2h(1.0/576)}, v{T+1}\nv_fma_f32 v{T+1}, -v{T}, v{T}, v{T+1}\nv_max_f32 v{T+1}, 0, v{T+1}\nv_add_f32 v{T+1}, {f2h(1e-5)}, v{T+1}")
    v(f"v_rsq_f32 v{T+2}, v{T+1}", 2)
    v(f"v_cvt_pk_bf16_f32 v{AB}, v{T}, v{T}\nv_mul_f32 v{C+2}, v{T+1}, v{T+2}\nv_mul_f32 v{C}, {f2h(K0)}, v{T+2}\nv_mul_f32 v{T+3}, v{T+2}, v{T+2}")
    v(f"v_mul_f32 v{C+1}, {f2h(0.044715)}, v{C}\nv_cvt_pk_bf16_f32 v{AB+4}, v{T}, v{C+2}\nv_mov_b32 v{AB+1}, v{AB}\nv_mov_b32 v{AB+5}, 0\nv_mul_f32 v{C+1}, v{C+1}, v{T+3}")
    v(f"v_mov_b32 v{C+3}, v{C}\nv_mov_b32 v{C+5}, v{C+2}\nv_mov_b32 v{C+4}, v{C+1}")
    v(f"v_permlane32_swap_b32 v{AB}, v{AB+4}\nv_permlane32_swap_b32 v{AB+1}, v{AB+5}\nv_permlane32_swap_b32 v{C}, v{C+3}\nv_permlane32_swap_b32 v{C+2}, v{C+5}\nv_permlane32_swap_b32 v{C+1}, v{C+4}")
    v(f"v_mov_b32 v{AB+2}, v{AB+1}\nv_mov_b32 v{AB+3}, v{AB+1}\nv_mov_b32 v{AB+6}, v{AB+5}\nv_mov_b32 v{AB+7}, v{AB+5}")
    v(f"v_add_u32 v{p.vAG}, s61, v{p.vAG}\nv_add_u32 v{p.vAG+1}, s61, v{p.vAG+1}")
    p.block(ev, X, mem, s, 12, 33, aug=[0])
    mem = {}
    for g, fn in enumerate(O_): mem.setdefault(g // 2, []).append(fn)
    s = p.exchange(mem, X, 0) + p.gelu(X, 0, (p.vHS, 0))
    mem[60] = p.rd_aug(1280)
    if cfg.touch2:
        for k, fn in enumerate(touch(162, 324)): mem.setdefault(62 + 2*k, []).append(fn)
    p.block(al, Y, mem, s, 14, 58, aug=[0, 1])
    for b in (2, 3, 4):
        acc, prev = (X, Y) if b % 2 == 0 else (Y, X)
        off = (2 + 4*(b-2)) * 4096
        mem = {60: p.rd_aug(1280 + 2560*(b-1))}
        if b == 4:
            mem[1] = [p.bar()]
            for n in range(40): mem.setdefault(3 + (n*66)//40, []).append(p.rd_h(n >> 1, n & 1))
        p.block(al, acc, mem, p.gelu(prev, 0, (p.vHW, off)) + p.gelu(prev + 16, 1, (p.vHW + 1, off)), 1, 72, aug=[0, 1])
    stamp(e, cfg, 12)
    mem = {1: [p.bar(), lambda: e.a("\n".join(f"v_add_u32 v{p.vHR+n}, 40960, v{p.vHR+n}" for n in range(4)))]}
    for n in range(40, 56): mem.setdefault(2 + 2*(n - 40), []).append(p.rd_h(n >> 1, n & 1, 40960))
    mem[51] = [p.bar()]
    for n in range(56, 72): mem.setdefault(52 + (n - 56)//2, []).append(p.rd_h(n >> 1, n & 1, 40960))
    off = 14 * 4096
    p.block(al, Y, mem, p.gelu(X, 0, (p.vHW, off)) + p.gelu(X + 16, 1, (p.vHW + 1, off)), 1, 49)
    def epi(acc, b): return p.pack(acc, p.vPS, 54, (b & 1)*1024 + (b >> 1)*512, 128) + p.pack(acc + 16, p.vPS + 1, 54, (b & 1)*1024 + (b >> 1)*512, 128)
    p.block(ev, X, {}, epi(Y, 0), 3, 12)
    mem = {}
    s = p.exchange(mem, X, L_EX2 - L_EX1) + p.pack(X, p.vPSS, 55, 0, 64)
    p.block(al, Y, mem, s, 14, 24)
    p.block(al, X, {}, epi(Y, 1), 3, 12)
    p.block(al, Y, {}, epi(X, 2), 3, 12)
    assert p.fc == 324
    for it in epi(Y, 3):
        if it[0] == 'v': e.a(it[1])
        else: it[1]()
    stamp(e, cfg, 13)
    signal(e, 2)

def phase4(e, cfg):
    R, HH, BB, A, AS = 48, 16, 28, 120, 136
    e.a(f"v_lshrrev_b32 v10, 3, v{vLANE}\nv_and_b32 v11, 7, v{vLANE}")
    e.a(f"v_lshlrev_b32 v12, 9, v10\nv_lshl_or_b32 v3, v11, 4, v12")
    e.a(f"v_lshlrev_b32 v4, 5, v10\nv_mul_u32_u24 v12, 1152, v11\nv_add_u32 v5, v12, v4")
    e.a(f"s_lshr_b32 s49, s{sJ}, 1\ns_lshl_b32 s50, s{sI}, 2\ns_add_u32 s49, s49, s50\ns_mul_i32 s49, s49, 19456\ns_and_b32 s50, s{sJ}, 1\ns_lshl_b32 s50, s50, 7\ns_add_u32 s49, s49, s50")
    e.a(f"s_lshl_b32 s50, s{sW}, 12\ns_add_u32 s49, s49, s50\ns_add_u32 s49, s49, {WS_H}\ns_lshl_b32 s50, s{sW}, 8")
    for k in range(2):
        e.vmem(f"buffer_load_dwordx4 {vr(HH+4*k)}, v3, {sr(WS)}, s49 offen offset:{256*k} sc1", "hb")
        e.vmem(f"buffer_load_dwordx4 {vr(BB+4*k)}, v4, {sr(B2)}, s50 offen offset:{16*k}", "hb")
    e.a(f"s_lshl_b32 s49, s{sI}, 3\ns_add_u32 s49, s49, s{sJ}\ns_mul_i32 s57, s49, {8*1152}\ns_add_u32 s57, s57, s50")
    e.a(f"v_bfe_u32 v10, v{vLANE}, 2, 2\nv_lshrrev_b32 v11, 5, v{vLANE}\nv_lshl_or_b32 v10, v10, 1, v11")
    e.a(f"v_bfe_u32 v11, v{vLANE}, 4, 1\nv_lshlrev_b32 v11, 2, v11\ns_lshl_b32 s49, s53, 3\nv_add_u32 v11, s49, v11\nv_and_b32 v12, 3, v{vLANE}")
    e.a("v_lshl_or_b32 v6, v10, 4, v11\nv_mul_u32_u24 v13, 1152, v12\nv_add_u32 v7, v13, v6\nv_lshl_or_b32 v8, v10, 8, v11\nv_lshl_or_b32 v8, v12, 4, v8")
    e.a(f"s_lshl_b32 s49, s52, 1\ns_lshr_b32 s50, s{sJ}, 2\ns_add_u32 s49, s49, s50\ns_lshl_b32 s50, s{sI}, 2\ns_add_u32 s49, s49, s50\ns_mul_i32 s49, s49, 19456")
    e.a(f"s_and_b32 s50, s{sJ}, 3\ns_lshl_b32 s50, s50, 6\ns_add_u32 s49, s49, s50\ns_add_u32 s49, s49, {WS_H + 64*256}")
    e.vmem(f"buffer_load_dword v{HH+8}, v8, {sr(WS)}, s49 offen sc1", "hb")
    e.vmem(f"buffer_load_dword v{BB+8}, v6, {sr(B2)}, 0 offen offset:1024", "hb")
    e.a(f"s_lshl_b32 s49, s{sI}, 4\ns_lshl_b32 s50, s52, 3\ns_add_u32 s49, s49, s50\ns_add_u32 s49, s49, s{sJ}\ns_mul_i32 s58, s49, {4*1152}")
    e.a(f"s_mul_i32 s49, s{sJ}, 18432\ns_add_u32 s56, s56, s49")
    wait_flags(e, 2)
    stamp(e, cfg, 14)
    order = [16, 17] + list(range(16))
    for n in order:
        if n in (16, 0, 4, 8, 12): e.a(f"s_add_u32 s50, s56, {1024*n}")
        e.vmem(f"buffer_load_dwordx4 {vr(R+4*n)}, v{vL16}, {sr(WS)}, s50 offen offset:{1024*(n&3)} sc1", f"p{n}")
    def unp(d, s): e.a(f"v_lshlrev_b32 v{d}, 16, v{s}\nv_and_b32 v{d+1}, 0xffff0000, v{s}")
    def acc(d, s, t=10): unp(t, s); e.a(f"v_pk_add_f32 {vr(d,2)}, {vr(d,2)}, {vr(t,2)}")
    for z in range(8): unp(A + 2*z, HH + z); acc(A + 2*z, BB + z, 10 + 2*(z & 1))
    unp(AS + 8, HH + 8); acc(AS + 8, BB + 8)
    e.need(vm="p17")
    for z in range(4): unp(AS + 2*z, R + 64 + z); acc(AS + 2*z, R + 68 + z, 10 + 2*(z & 1))
    e.a("s_nop 1")
    for z in range(4): e.a(f"v_permlane32_swap_b32 v{AS+z}, v{AS+4+z}")
    e.a(f"s_nop 0\nv_pk_add_f32 {vr(AS,2)}, {vr(AS,2)}, {vr(AS+4,2)}\nv_pk_add_f32 {vr(AS+2,2)}, {vr(AS+2,2)}, {vr(AS+6,2)}\ns_nop 1")
    for z in range(2): e.a(f"v_permlane16_swap_b32 v{AS+z}, v{AS+2+z}")
    e.a(f"s_nop 0\nv_pk_add_f32 {vr(AS,2)}, {vr(AS,2)}, {vr(AS+2,2)}\nv_pk_add_f32 {vr(AS,2)}, {vr(AS,2)}, {vr(AS+8,2)}\nv_cvt_pk_bf16_f32 v{AS}, v{AS}, v{AS+1}")
    for n in range(16):
        e.need(vm=f"p{n}")
        blk = n & 1
        for z in range(4): acc(A + 8*(z >> 1) + 4*blk + 2*(z & 1), R + 4*n + z, 10 + 2*(z & 1))
    for z in range(8): e.a(f"v_cvt_pk_bf16_f32 v{HH+z}, v{A+2*z}, v{A+2*z+1}")
    for k in range(2): e.vmem(f"buffer_store_dwordx4 {vr(HH+4*k)}, v5, {sr(OUT)}, s57 offen offset:{16*k}")
    e.vmem(f"buffer_store_dword v{AS}, v7, {sr(OUT)}, s58 offen offset:1024")
    stamp(e, cfg, 15)

def finish(e, cfg):
    if cfg.amp >= 0:
        e.a(f"s_sub_u32 s49, s{86+cfg.amp}, s{86+cfg.amp0}\ns_min_u32 s49, s49, 20000\ns_mul_i32 s49, s49, 20\nL_amp:\ns_memrealtime s[62:63]\ns_waitcnt lgkmcnt(0)\ns_sub_u32 s62, s62, s101\ns_cmp_lt_u32 s62, s49\ns_cbranch_scc1 L_amp")
    if cfg.stamps:
        e.a(f"s_lshl_b32 s49, s2, 2\ns_add_u32 s49, s49, s{sW}\ns_lshl_b32 s49, s49, 6\ns_add_u32 s49, s49, {WS_DBG}\nv_mov_b32 v10, 0")
        for k in range(16): e.a(f"v_writelane_b32 v10, s{86+k}, {k}")
        e.a(f"v_lshlrev_b32 v11, 2, v{vLANE}\ns_mov_b64 exec, 0xffff\nbuffer_store_dword v10, v11, {sr(WS)}, s49 offen")
    e.a("s_endpgm\nL_end:")

def build(cfg):
    e = E()
    if cfg.stamps:
        for k in range(16): e.a(f"s_mov_b32 s{86+k}, 0")
    prologue(e, cfg)
    e.a(f"s_cmp_eq_u32 s{sW}, 3\ns_cbranch_scc1 L_helper")
    phase1_gemm(e, cfg)
    e.a("L_join:")
    attention(e, cfg)
    if cfg.stop > 1: phase2(e, cfg)
    if cfg.stop > 2: phase3(e, cfg)
    if cfg.stop > 3: phase4(e, cfg)
    e.a("s_branch L_fin\nL_helper:")
    e.vm = []; e.lg = []
    phase1_helper(e, cfg)
    e.a("s_branch L_join\nL_fin:")
    finish(e, cfg)
    hdr = open("sequential_preLN__sliding_local_dilated__dense_activation_gelu__prompt.s.ref").read().split("; Override launch")[0]
    return (hdr + f"; @launch grid=(256,1,1) block=(256,1,1) lds={LDS_BYTES}\n"
        + f'.amdgcn_target "amdgcn-amd-amdhsa--gfx950"\n.text\n.globl {NAME}\n.p2align 8\n.type {NAME},@function\n{NAME}:\n'
        + e.text() + f""".section .rodata,"a"
.p2align 6
.amdhsa_kernel {NAME}
  .amdhsa_next_free_vgpr 512
  .amdhsa_next_free_sgpr 102
  .amdhsa_accum_offset 256
  .amdhsa_group_segment_fixed_size 0
  .amdhsa_kernarg_size 88
  .amdhsa_user_sgpr_count 2
  .amdhsa_user_sgpr_kernarg_segment_ptr 1
  .amdhsa_system_sgpr_workgroup_id_x 1
  .amdhsa_float_denorm_mode_32 3
.end_amdhsa_kernel
""")
Cfg.npre = 8; Cfg.amp = -1; Cfg.amp0 = 0
def make(path, **kw):
    from runlib import assemble
    cfg = Cfg()
    for k, v in kw.items(): setattr(cfg, k, v)
    t = build(cfg); open(path, "w").write(t)
    assemble(t, path[:-2] + ".co", NAME, 11)
    return t
if __name__ == "__main__":
    kw = {}
    for a in sys.argv[2:]:
        k, v = a.split("="); kw[k] = int(v)
    t = make(sys.argv[1], **kw)
    print("lines", t.count("\n"), "bytes", len(t))
```
